```python
import torch

def _softmax(x, axis=-1):
    return torch.softmax(x, dim=axis)
def _gelu(x):
    return torch.nn.functional.gelu(x, approximate="tanh")
def _silu(x):
    return torch.nn.functional.silu(x)
def _sigmoid(x):
    return torch.sigmoid(x)
def _layernorm(x, axis=-1, eps=1e-5):
    m = x.mean(dim=axis, keepdim=True)
    v = x.var(dim=axis, keepdim=True, unbiased=False)
    return (x - m) / torch.sqrt(v + eps)
def _scatter_add(tgt, idx, src, axis=0):
    return tgt.clone().index_add_(axis, idx, src)
def _segment_sum(src, seg, n):
    out = torch.zeros((n,) + src.shape[1:], dtype=src.dtype)
    return out.index_add_(0, seg, src)
def _pad(x, pw):
    flat = tuple(v for pair in reversed(pw) for v in pair)
    return torch.nn.functional.pad(x, flat)

kernel_name = 'parallel_sum__sliding_block_cached__glu_gated_glu__decode'

def setup_inputs():

    _w = (lambda a: (lambda t: t.to(torch.bfloat16) if t.is_floating_point() else t)(torch.as_tensor(a)))
    def _A_setup():
        B, Sq, D = 1, 1, 640
        Hq, Hkv, Sk, Dh = 32, 32, 32768, 128
        assert Hq % Hkv == 0, (Hq, Hkv)
        return {
            "x": _w((lambda *s: torch.randn(*s, dtype=torch.bfloat16) * 0.05)(B, Sq, D)),
            "k_cache": _w((lambda *s: torch.randn(*s, dtype=torch.bfloat16) * 3.2)(B, Hkv, Sk, Dh)),
            "v_cache": _w((lambda *s: torch.randn(*s, dtype=torch.bfloat16) * 1.6)(B, Hkv, Sk, Dh)),
            "wq": _w((lambda *s: torch.randn(*s, dtype=torch.bfloat16) * 3.2)(D, Hq * Dh) * (D ** -0.5)),
            "wo": _w((lambda *s: torch.randn(*s, dtype=torch.bfloat16) * 1.6)(Hq * Dh, D) * ((Hq * Dh) ** -0.5)),
        }
    _A_in = _A_setup()

    def _B_setup():
        B, S, D, F = 1, 1, 640, 1728
        return {
            "x": _w((lambda *s: torch.randn(*s, dtype=torch.bfloat16) * 0.05)(B, S, D)),
            "w_gate": _w((lambda *s: torch.randn(*s, dtype=torch.bfloat16) * 0.2)(D, F)),
            "w_up": _w((lambda *s: torch.randn(*s, dtype=torch.bfloat16) * 0.05)(D, F)),
            "w_down": _w((lambda *s: torch.randn(*s, dtype=torch.bfloat16) * 0.05)(F, D)),
        }
    _B_in = _B_setup()

    return {
        "A_x": _A_in["x"],
        "A_k_cache": _A_in["k_cache"],
        "A_v_cache": _A_in["v_cache"],
        "A_wq": _A_in["wq"],
        "A_wo": _A_in["wo"],
        "B_x": _B_in["x"],
        "B_w_gate": _B_in["w_gate"],
        "B_w_up": _B_in["w_up"],
        "B_w_down": _B_in["w_down"],
    }

def reference(A_x, A_k_cache, A_v_cache, A_wq, A_wo, B_x, B_w_gate, B_w_up, B_w_down):
    def _A_ref(x, k_cache, v_cache, wq, wo):
        B, Sq, D = x.shape
        Hq, Dh = 32, 128
        Hkv, Sk = k_cache.shape[1], k_cache.shape[2]
        W = min(4096, max(256, Sk // 4))
        rep = Hq // Hkv
        q = (lambda x, *d: x.permute(*d))((x @ wq).reshape(B, Sq, Hq, Dh), 0, 2, 1, 3)
        k = (lambda x, n, axis: torch.repeat_interleave(x, n, dim=axis))(k_cache[:, :, Sk - W:, :], rep, axis=1)
        v = (lambda x, n, axis: torch.repeat_interleave(x, n, dim=axis))(v_cache[:, :, Sk - W:, :], rep, axis=1)
        scores = torch.einsum("bhqd,bhkd->bhqk", q, k) * (Dh ** -0.5)
        p = _softmax(scores, axis=-1)
        o = torch.einsum("bhqk,bhkd->bhqd", p, v)
        return (lambda x, *d: x.permute(*d))(o, 0, 2, 1, 3).reshape(B, Sq, Hq * Dh) @ wo

    def _B_ref(x, w_gate, w_up, w_down):
        g = torch.einsum("bsd,df->bsf", x, w_gate)
        u = torch.einsum("bsd,df->bsf", x, w_up)
        h = _sigmoid(g) * u
        return torch.einsum("bsf,fd->bsd", h, w_down)

    x = A_x
    xn = _layernorm(x, axis=-1)
    return x + _A_ref(xn, A_k_cache, A_v_cache, A_wq, A_wo) + _B_ref(xn, B_w_gate, B_w_up, B_w_down)
```

```python
import re

TRANS = ("v_exp_f32", "v_log_f32", "v_rcp_f32", "v_rsq_f32", "v_sqrt_f32", "v_sin_f32", "v_cos_f32")

def _regs(tok):
    tok = tok.strip()
    m = re.fullmatch(r"-?\|?([vs])(\d+)\|?", tok)
    if m: return [(m.group(1), int(m.group(2)))]
    m = re.fullmatch(r"([vs])\[(\d+):(\d+)\]", tok)
    if m: return [(m.group(1), i) for i in range(int(m.group(2)), int(m.group(3)) + 1)]
    if tok == "vcc": return [("s", 106), ("s", 107)]
    if tok == "exec": return [("s", 126), ("s", 127)]
    return []

class Asm:
    def __init__(self):
        self.lines = []
    def __call__(self, text):
        for t in text.strip("\n").split("\n"):
            t = t.strip()
            if t: self.lines.append(t)
    def label(self, name):
        self.lines.append(name + ":")
    def render(self):
        out = []
        pos = 0
        last_valu_vw = {}
        last_trans_vw = {}
        last_dot_vw = {}
        last_valu_sw = {}
        last_store_data = {}
        def need(n, since):
            return max(0, n - (pos - since - 1))
        for t in self.lines:
            if t.endswith(":") or t.startswith(".") or t.startswith(";"):
                out.append(t)
                if t.endswith(":"):
                    out.append("  s_nop 4"); pos += 5
                continue
            body = t.split(";")[0].strip()
            parts = body.split(None, 1)
            op = parts[0]
            ops = []
            mods = ""
            if len(parts) > 1:
                fields = [f.strip() for f in parts[1].split(",")]
                last = fields[-1].split()
                fields[-1] = last[0] if last else ""
                mods = " ".join(last[1:])
                if "quad_perm" in parts[1]:
                    pre, post = parts[1].split("quad_perm", 1)
                    fields = [f.strip() for f in pre.strip().split(",") if f.strip()]
                    mods = "quad_perm" + post
                ops = fields
            is_valu = op.startswith("v_")
            is_vmem = op.startswith(("global_", "buffer_", "flat_"))
            is_ds = op.startswith("ds_")
            is_dpp = "_dpp" in op or any(k in mods for k in ("row_", "quad_perm", "wave_"))
            is_perm = op.startswith("v_permlane")
            is_rl = op in ("v_readlane_b32", "v_readfirstlane_b32")
            is_dot = op.startswith("v_dot")
            is_trans = op.replace("_e32", "").replace("_e64", "") in TRANS
            dst, src = [], []
            if is_valu:
                if op.startswith("v_cmp"):
                    dst = _regs(ops[0]); src = sum((_regs(o) for o in ops[1:]), [])
                elif is_perm:
                    dst = _regs(ops[0]) + _regs(ops[1]); src = list(dst)
                else:
                    dst = _regs(ops[0]); src = sum((_regs(o) for o in ops[1:]), [])
                    if op.startswith(("v_dot2c", "v_fmac", "v_mac")) or is_dpp:
                        src = src + dst
                    if op.startswith(("v_add_co", "v_addc_co", "v_sub_co")):
                        dst = dst + _regs(ops[1])
                    if op.startswith("v_cndmask") and len(ops) == 3:
                        src = src + _regs("vcc")
            elif is_vmem or is_ds:
                allr = sum((_regs(o) for o in ops), [])
                if "load" in op or "ds_read" in op or ("atomic" in op and "sc0" in mods) or "bpermute" in op:
                    dst = _regs(ops[0]); src = sum((_regs(o) for o in ops[1:]), [])
                else:
                    src = allr
            else:
                src = []; dst = []
            extra = 0
            vsrc = [n for k, n in src if k == "v"]
            ssrc = [n for k, n in src if k == "s"]
            vdst = [n for k, n in dst if k == "v"]
            sdst = [n for k, n in dst if k == "s"]
            if is_valu:
                for n in vsrc:
                    if n in last_valu_vw:
                        if is_dpp or is_perm: extra = max(extra, need(2, last_valu_vw[n]))
                        if is_rl: extra = max(extra, need(1, last_valu_vw[n]))
                    if n in last_trans_vw and not is_trans: extra = max(extra, need(1, last_trans_vw[n]))
                for n in set(vsrc + vdst):
                    if n in last_dot_vw:
                        p, o = last_dot_vw[n]
                        same = (o == op.replace("_dpp", "").replace("_e32", ""))
                        isC = same and is_dot and (n in vdst)
                        if not isC: extra = max(extra, need(3, p))
                for n in ssrc:
                    if n in last_valu_sw:
                        extra = max(extra, need(4 if is_rl else 2, last_valu_sw[n]))
                for n in vdst:
                    if n in last_store_data: extra = max(extra, need(2, last_store_data[n]))
            if is_vmem or is_ds:
                for n in ssrc:
                    if n in last_valu_sw: extra = max(extra, need(5, last_valu_sw[n]))
                for n in vsrc:
                    if n in last_dot_vw: extra = max(extra, need(3, last_dot_vw[n][0]))
                    if n in last_trans_vw: extra = max(extra, need(1, last_trans_vw[n]))
                for n in vdst:
                    if n in last_store_data: extra = max(extra, need(1, last_store_data[n]))
            if op.startswith("s_") and not op.startswith(("s_nop", "s_waitcnt", "s_barrier", "s_load", "s_mem")):
                allr = sum((_regs(o) for o in ops), [])
                rd = [n for k, n in allr if k == "s"]
                if "vcc" in op: rd += [106, 107]
                for n in rd:
                    if n in last_valu_sw: extra = max(extra, need(1, last_valu_sw[n]))
            if extra:
                out.append(f"  s_nop {extra-1}"); pos += extra
            out.append("  " + t)
            if op == "s_nop":
                pos += int(ops[0]) + 1
            else:
                pos += 1
            p = pos - 1
            if is_valu:
                for n in vdst:
                    last_valu_vw[n] = p
                    if is_trans: last_trans_vw[n] = p
                    else: last_trans_vw.pop(n, None)
                    if is_dot: last_dot_vw[n] = (p, op.replace("_dpp", "").replace("_e32", ""))
                    else: last_dot_vw.pop(n, None)
                for n in sdst: last_valu_sw[n] = p
            if is_vmem and "store" in op and ("x4" in op or "x3" in op):
                for n in vsrc: last_store_data[n] = p
        return "\n".join(out) + "\n"
```

```python
import sys, os
from asmlib import Asm
NAME = "parallel_sum__sliding_block_cached__glu_gated_glu__decode_kernel"
STAMPS = int(os.environ.get("STAMPS", "0"))
STAMPWAVE = int(os.environ.get("STAMPWAVE", "0"))
D = int(os.environ.get("DEPTH", "6"))
KINIT = int(os.environ.get("KINIT", "4"))
B2_AT = int(os.environ.get("B2_AT", "8"))
NST = 8
XN = 0
RED1 = 1280; R1S = 784
QP = RED1 + 8 * R1S
MAXA = QP + 4096
LRED = MAXA + 64
RED2 = LRED + 64
RED3 = RED2 + 4096
RED4 = RED3 + 5120
LDS_BYTES = RED4 + 5120
assert QP % 16 == 0 and RED3 % 16 == 0 and RED4 % 16 == 0
REC = 2304
R_O = 0; R_ML = 512; R_GLU = 640; R_Y = 1152; R_Q = 1792
STAMP_OFF = 1 << 20
LOG2E = 0x3fb8aa3b
SCALE = 0x3db504f3
SPIN_MAX = 200000

a = Asm()
def stamp(i):
    if STAMPS: a(f"s_memrealtime s[{60+2*i}:{61+2*i}]")
def v(n): return f"v{n}"
def v4(n): return f"v[{n}:{n+3}]"
DPPM = "row_mask:0xf bank_mask:0xf"
def rows_allreduce(op, x, t):
    a(f"v_mov_b32 {t}, {x}\nv_permlane32_swap_b32 {x}, {t}\n{op} {x}, {x}, {t}")
    a(f"v_mov_b32 {t}, {x}\nv_permlane16_swap_b32 {x}, {t}\n{op} {x}, {x}, {t}")
def row_allreduce(op, x, rors=(8, 4, 2, 1)):
    for r in rors: a(f"{op}_dpp {x}, {x}, {x} row_ror:{r} {DPPM}")
def rbf(dst, src): a(f"v_cvt_pk_bf16_f32 {dst}, 0, {src}")
def reduce8_g(A):
    for i in range(4): a(f"v_permlane32_swap_b32 v{A+i}, v{A+i+4}")
    for i in range(4): a(f"v_add_f32 v{A+i}, v{A+i}, v{A+i+4}")
    for i in range(2): a(f"v_permlane16_swap_b32 v{A+i}, v{A+i+2}")
    for i in range(2): a(f"v_add_f32 v{A+i}, v{A+i}, v{A+i+2}")

XA_l, XA_h = 12, 13
XG = 17
MX = 23
ACC = 24
S = 32; AC2 = 32
WB = 64
GL = 76
TL = 64
QR = 88
PQ = 92
KB = 112
VB = 176
NVGPR = 240

a("s_load_dwordx16 s[4:19], s[0:1], 0\ns_load_dwordx8 s[20:27], s[0:1], 64")
stamp(0)
a(f"""
s_cmp_ge_u32 s2, 256
s_cbranch_scc1 L_end
s_and_b32 s28, s2, 31
s_lshr_b32 s29, s2, 5
v_lshrrev_b32 v2, 6, v0
v_and_b32 v0, 63, v0
v_readfirstlane_b32 s3, v2
v_lshlrev_b32 v1, 4, v0
v_lshl_add_u32 v1, v2, 10, v1                 ; kv offset = w*1024 + l*16
v_lshrrev_b32 v15, 4, v0                      ; g
v_and_b32 v3, 15, v0                          ; c
v_mul_u32_u24 v5, 10, v2
v_add_u32 v5, v5, v15                         ; 10w+g
v_lshlrev_b32 v10, 13, v5
v_lshl_add_u32 v10, v3, 4, v10
v_mul_u32_u24 v9, 20, v0
v_lshrrev_b32 v6, 3, v0                       ; r
s_movk_i32 s39, 3456
v_mul_lo_u32 v11, v6, s39
v_and_b32 v7, 7, v0
v_lshl_add_u32 v11, v7, 4, v11
v_mov_b32 v97, 0
v_cmp_gt_u32 s[34:35], 10, v3
v_cmp_gt_u32 s[36:37], 4, v6                  ; r<4
v_cmp_gt_u32 s[54:55], 32, v0                 ; lanes<32 (g<2)
v_and_b32 v7, 2, v0
v_cmp_ne_u32 s[30:31], 0, v7
v_and_b32 v7, 1, v0
v_cmp_ne_u32 s[52:53], 0, v7
s_lshl_b32 s38, s28, 23
s_lshl_b32 s39, s29, 17
s_add_u32 s38, s38, s39
s_add_u32 s38, s38, 7340032
s_min_u32 s46, s28, 26
s_lshl_b32 s40, s46, 7
s_lshl_b32 s41, s28, 8
s_mul_i32 s42, s29, {80*8192}
s_add_u32 s41, s41, s42
s_mul_i32 s42, s2, {REC}
s_mul_i32 s43, s28, {REC}
s_and_b32 s58, s3, 3
s_mul_i32 s58, s58, 20
s_mul_i32 s59, s29, 80
s_add_u32 s58, s58, s59
s_mul_i32 s59, s58, 3456
s_add_u32 s59, s59, s40
s_cmp_lt_u32 s28, 27
s_cselect_b64 s[50:51], -1, 0
v_cndmask_b32 v11, 0, v11, s[50:51]
s_waitcnt lgkmcnt(0)
s_add_u32 s44, s26, s42
s_addc_u32 s45, s27, 0
s_cmp_lg_u32 s3, 0
s_cbranch_scc1 L_noclear
v_mov_b32 v56, -1
v_mov_b32 v57, -1
v_mov_b32 v58, -1
v_mov_b32 v59, -1
v_lshlrev_b32 v60, 4, v0
global_store_dwordx4 v60, v[56:59], s[44:45] sc1
global_store_dwordx4 v60, v[56:59], s[44:45] offset:1024 sc1
v_cmp_gt_u32 vcc, 16, v0
s_and_saveexec_b64 s[32:33], vcc
global_store_dwordx4 v60, v[56:59], s[44:45] offset:2048 sc1
s_mov_b64 exec, s[32:33]
""")
a.label("L_noclear")
a(f"""
global_load_dwordx4 v[48:51], v9, s[4:5]
global_load_dword v52, v9, s[4:5] offset:16
s_add_u32 s6, s6, s38
s_addc_u32 s7, s7, 0
s_add_u32 s8, s8, s38
s_addc_u32 s9, s9, 0
s_add_u32 s10, s10, s41
s_addc_u32 s11, s11, 0
s_cmp_ge_u32 s3, 4
s_cselect_b32 s56, s18, s16
s_cselect_b32 s57, s19, s17
s_add_u32 s56, s56, s59
s_addc_u32 s57, s57, 0
s_add_u32 s48, s26, s43
s_addc_u32 s49, s27, 0
s_lshl_b32 s38, s28, 2
s_add_u32 s24, s24, s38                       ; &cnt[h]
s_addc_u32 s25, s25, 0
""")
stream = [("w", j) for j in range(3)] + [("g", i) for i in range(3)]
stream += [("k", j) for j in range(16)] + [("v", j) for j in range(16)] + [("t", j) for j in range(6)]
issued = [0]
extra = []
order = []
def issue_next():
    if issued[0] >= len(stream): return
    kind, j = stream[issued[0]]
    order.append((kind, j))
    issued[0] += 1
    if kind == "w":
        if j == 2: a("s_mov_b64 s[32:33], exec\ns_mov_b64 exec, s[54:55]")
        a(f"global_load_dwordx4 {v4(WB+4*j)}, v10, s[10:11] nt")
        if j == 2: a("s_mov_b64 exec, s[32:33]")
        else: a("s_add_u32 s10, s10, 32768\ns_addc_u32 s11, s11, 0")
    elif kind in "kv":
        lo = 6 if kind == "k" else 8
        B = KB if kind == "k" else VB
        a(f"global_load_dwordx4 {v4(B+4*j)}, v1, s[{lo}:{lo+1}] nt")
        if j < 15: a(f"s_add_u32 s{lo}, s{lo}, 8192\ns_addc_u32 s{lo+1}, s{lo+1}, 0")
    elif kind == "g":
        if j == 2: a("s_mov_b64 s[32:33], exec\ns_mov_b64 exec, s[36:37]")
        a(f"global_load_dwordx4 {v4(GL+4*j)}, v11, s[56:57] nt")
        if j == 2: a("s_mov_b64 exec, s[32:33]")
        else: a(f"s_add_u32 s56, s56, {8*3456}\ns_addc_u32 s57, s57, 0")
    elif kind == "t":
        a("s_mov_b64 s[32:33], exec\ns_mov_b64 exec, s[34:35]")
        if j < 4:
            a(f"global_load_dwordx4 {v4(TL+4*j)}, v5, s[{12 if j < 2 else 40}:{13 if j < 2 else 41}] offset:{(j&1)*1280} nt")
        else:
            a(f"global_load_dwordx4 {v4(TL+4*j)}, v6, s[20:21] offset:{(j&1)*1280} nt")
        a("s_mov_b64 exec, s[32:33]")
def wait_for(item):
    i = order.index(item)
    a(f"s_waitcnt vmcnt({len(order) - 1 - i})")
def refill(done_item):
    i = order.index(done_item)
    while issued[0] < len(stream) and len(order) - 1 - i < D:
        issue_next()

for _ in range(6 + KINIT): issue_next()
a(f"s_waitcnt vmcnt({6 + KINIT})")
stamp(1)
a(f"""
s_cmp_lg_u32 s3, 0
s_cbranch_scc1 L_nosig
v_mov_b32 v57, 1
v_cmp_eq_u32 vcc, 0, v0
s_and_saveexec_b64 s[32:33], vcc
global_atomic_add v97, v57, s[24:25] sc1
s_mov_b64 exec, s[32:33]
""")
a.label("L_nosig")
for k in range(5):
    a(f"v_lshlrev_b32 v{24+k}, 16, v{48+k}\nv_and_b32 v{32+k}, 0xffff0000, v{48+k}")
a("""
v_add_f32 v53, v24, v32
v_add_f32 v54, v25, v33
v_add_f32 v55, v26, v34
v_add_f32 v56, v27, v35
v_add_f32 v57, v28, v36
v_add_f32 v53, v53, v54
v_add_f32 v55, v55, v56
v_add_f32 v53, v53, v57
v_add_f32 v53, v53, v55
""")
row_allreduce("v_add_f32", "v53")
rows_allreduce("v_add_f32", "v53", "v54")
a("v_mul_f32 v53, 0x3acccccd, v53")
XS = [24, 25, 26, 27, 28, 32, 33, 34, 35, 36]
a("v_sub_f32 v55, v24, v53\nv_mul_f32 v54, v55, v55")
for r in XS[1:]:
    a(f"v_sub_f32 v55, v{r}, v53\nv_fmac_f32 v54, v55, v55")
row_allreduce("v_add_f32", "v54")
rows_allreduce("v_add_f32", "v54", "v55")
a("v_mul_f32 v54, 0x3acccccd, v54")
rbf("v53", "v53"); rbf("v54", "v54")
a("v_add_f32 v54, 0x3727c5ac, v54")
rbf("v54", "v54")
a("""
v_sqrt_f32 v55, v54
v_rcp_f32 v56, v55
v_fma_f32 v57, -v55, v55, v54
v_mul_f32 v56, 0.5, v56
v_fma_f32 v55, v57, v56, v55
""")
rbf("v55", "v55")
a("v_rcp_f32 v56, v55")
for r in XS: a(f"v_sub_f32 v{r}, v{r}, v53")
for r in XS: rbf(v(r), v(r))
for r in XS:
    a(f"v_mul_f32 v57, v{r}, v56\nv_fma_f32 v58, -v57, v55, v{r}\nv_fma_f32 v{r}, v58, v56, v57")
for k in range(5): a(f"v_cvt_pk_bf16_f32 v{48+k}, v{24+k}, v{32+k}")
for k in range(5): a(f"ds_write_b32 v9, v{48+k} offset:{XN+4*k}")
a(f"""
s_mul_i32 s38, s3, 20
s_mul_i32 s39, s29, 160
s_add_u32 s38, s38, s39
v_lshlrev_b32 v5, 3, v3
v_lshl_add_u32 v5, v15, 1, v5
v_add_u32 v5, s38, v5                          ; 2*(80s + 10w + 4c + g)
ds_read_u16 v{XA_l}, v5 offset:{XN}
s_lshl_b32 s38, s58, 1
v_lshrrev_b32 v6, 3, v0
v_lshl_add_u32 v6, v6, 1, s38
ds_read_u16 v{XG}, v6 offset:{XN}
ds_read_u16 v{XG+2}, v6 offset:{XN+16}
ds_read_u16 v{XG+4}, v6 offset:{XN+32}
""")
for i in range(16): a(f"v_mov_b32 v{ACC+i}, 0")
a(f"""
s_waitcnt lgkmcnt(0)
v_lshlrev_b32 v{XA_h}, 16, v{XA_l}
v_lshlrev_b32 v{XG+1}, 16, v{XG}
v_lshlrev_b32 v{XG+3}, 16, v{XG+2}
v_lshlrev_b32 v{XG+5}, 16, v{XG+4}
""")
for j in range(3):
    wait_for(("w", j))
    if j == 2: a("s_mov_b64 s[32:33], exec\ns_mov_b64 exec, s[54:55]")
    for i in range(4):
        a(f"v_dot2c_f32_bf16_dpp v{ACC+2*i}, v{XA_l}, v{WB+4*j+i} row_newbcast:{j} {DPPM}")
        a(f"v_dot2c_f32_bf16_dpp v{ACC+2*i+1}, v{XA_h}, v{WB+4*j+i} row_newbcast:{j} {DPPM}")
    if j == 2: a("s_mov_b64 exec, s[32:33]")
    refill(("w", j))
reduce8_g(ACC)
a(f"""
v_lshlrev_b32 v4, 5, v3
v_lshl_add_u32 v4, v15, 3, v4
s_mul_i32 s38, s3, {R1S}
v_add_u32 v5, s38, v4
ds_write_b64 v5, v[{ACC}:{ACC+1}] offset:{RED1}
""")
for j in range(3):
    wait_for(("g", j))
    if j == 2: a("s_mov_b64 s[32:33], exec\ns_mov_b64 exec, s[36:37]")
    for i in range(4):
        a(f"v_dot2c_f32_bf16 v{AC2+2*i}, v{XG+2*j}, v{GL+4*j+i}")
        a(f"v_dot2c_f32_bf16 v{AC2+2*i+1}, v{XG+2*j+1}, v{GL+4*j+i}")
    if j == 2: a("s_mov_b64 exec, s[32:33]")
    refill(("g", j))
reduce8_g(AC2)
a(f"""
v_add_f32_dpp v{AC2}, v{AC2}, v{AC2} row_ror:8 row_mask:0xf bank_mask:0x3
v_add_f32_dpp v{AC2}, v{AC2+1}, v{AC2+1} row_ror:8 row_mask:0xf bank_mask:0xc
v_and_b32 v5, 7, v0
v_lshlrev_b32 v5, 5, v5
v_lshrrev_b32 v6, 5, v0
v_lshl_add_u32 v5, v6, 4, v5
v_bfe_u32 v6, v0, 4, 1
v_lshl_add_u32 v5, v6, 3, v5
v_bfe_u32 v6, v0, 3, 1
v_lshl_add_u32 v5, v6, 2, v5
s_mul_i32 s38, s3, {R1S}
v_add_u32 v5, s38, v5
ds_write_b32 v5, v{AC2} offset:{RED1+512}
s_waitcnt lgkmcnt(0)
s_barrier
v_and_b32 v6, 31, v0
v_lshrrev_b32 v7, 5, v0
s_cmp_ge_u32 s3, 4
s_cbranch_scc1 L_glupub
v_mul_u32_u24 v7, {4*R1S}, v7
v_lshl_add_u32 v7, v6, 2, v7
s_lshl_b32 s38, s3, 7
v_add_u32 v7, s38, v7
ds_read_b32 v48, v7 offset:{RED1}
ds_read_b32 v49, v7 offset:{RED1+R1S}
ds_read_b32 v50, v7 offset:{RED1+2*R1S}
ds_read_b32 v51, v7 offset:{RED1+3*R1S}
s_add_u32 s38, s38, {R_Q}
v_lshl_add_u32 v6, v6, 2, s38
s_waitcnt lgkmcnt(0)
v_add_f32 v48, v48, v49
v_add_f32 v50, v50, v51
v_add_f32 v48, v48, v50
s_branch L_pub0
""")
a.label("L_glupub")
a(f"""
v_mul_u32_u24 v7, {2*R1S}, v7
v_lshl_add_u32 v7, v6, 2, v7
s_and_b32 s38, s3, 1
s_lshl_b32 s38, s38, 7
s_bfe_u32 s39, s3, 0x10001
s_mul_i32 s40, s39, {4*R1S}
s_add_u32 s40, s40, s38
v_add_u32 v7, s40, v7
ds_read_b32 v48, v7 offset:{RED1+512}
ds_read_b32 v49, v7 offset:{RED1+512+R1S}
s_lshl_b32 s39, s39, 8
s_add_u32 s39, s39, s38
s_add_u32 s39, s39, {R_GLU}
v_lshl_add_u32 v6, v6, 2, s39
s_waitcnt lgkmcnt(0)
v_add_f32 v48, v48, v49
""")
a.label("L_pub0")
a(f"""
v_mov_b32 v49, v48
v_permlane32_swap_b32 v48, v49
v_add_f32 v48, v48, v49
v_min_u32 v48, 0xfffffffe, v48
s_mov_b64 s[32:33], exec
s_mov_b64 exec, s[54:55]
global_store_dword v6, v48, s[44:45] sc1
s_mov_b64 exec, s[32:33]
""")
order.append(("pub", 0))
stamp(2)
a(f"""
s_mul_i32 s38, s3, {32*REC}
s_add_u32 s42, s48, s38
s_addc_u32 s43, s49, 0
v_lshlrev_b32 v8, 4, v0
s_mov_b32 s58, 0
global_load_dword v96, v97, s[24:25] sc1
""")
def checkpoint(n, final=False):
    a(f"""
s_cmp_eq_u32 s58, 2
s_cbranch_scc1 L_ck{n}_skip
s_cmp_eq_u32 s58, 1
s_cbranch_scc1 L_ck{n}_data
v_readfirstlane_b32 s38, v96
s_cmp_ge_u32 s38, 8
s_cbranch_scc1 L_ck{n}_cntok
global_load_dword v96, v97, s[24:25] sc1
s_branch L_ck{n}_skip
""")
    a.label(f"L_ck{n}_data")
    a(f"""
s_mov_b64 s[32:33], exec
s_mov_b64 exec, s[54:55]
v_max_u32 v48, v{PQ}, v{PQ+1}
v_max3_u32 v48, v48, v{PQ+2}, v{PQ+3}
v_cmp_eq_u32 vcc, -1, v48
s_mov_b64 exec, s[32:33]
s_cbranch_vccnz L_ck{n}_cntok
s_mov_b32 s58, 2
s_branch L_ck{n}_skip
""")
    a.label(f"L_ck{n}_cntok")
    a(f"""
s_mov_b32 s58, 1
s_mov_b64 s[32:33], exec
s_mov_b64 exec, s[54:55]
global_load_dwordx4 {v4(PQ)}, v8, s[42:43] offset:{R_Q} sc1
s_mov_b64 exec, s[32:33]
""")
    a.label(f"L_ck{n}_skip")
kv_items = [("k", j) for j in range(16)] + [("v", j) for j in range(B2_AT + 1)]
mark = len(order)
nck = 0
for it in kv_items:
    if order.index(it) < order.index(("pub", 0)) and False: continue
    wait_for(it)
    if order.index(it) >= mark:
        checkpoint(nck); nck += 1
        mark = len(order)
    refill(it)
a(f"s_cmp_eq_u32 s58, 2\ns_cbranch_scc1 L_pqok\ns_waitcnt vmcnt({len(order) - mark})")
checkpoint(nck); nck += 1
a("s_mov_b32 s47, 0")
a.label("L_pqloop")
a("s_waitcnt vmcnt(0)" if False else "")
a(f"""
s_cmp_eq_u32 s58, 2
s_cbranch_scc1 L_pqok
s_add_u32 s47, s47, 1
s_cmp_ge_u32 s47, {SPIN_MAX}
s_cbranch_scc1 L_pqok
s_waitcnt vmcnt(0)
""")
checkpoint(nck)
a("s_branch L_pqloop")
a.label("L_pqok")
a(f"""
s_mov_b64 s[32:33], exec
s_mov_b64 exec, s[54:55]
s_lshl_b32 s38, s3, 9
v_add_u32 v5, s38, v8
ds_write_b128 v5, {v4(PQ)} offset:{QP}
s_mov_b64 exec, s[32:33]
s_waitcnt lgkmcnt(0)
s_barrier
v_lshlrev_b32 v6, 5, v3
""")
for half in range(2):
    for r in range(4):
        a(f"ds_read_b128 v[{32+8*r}:{35+8*r}], v6 offset:{QP+512*(4*half+r)}")
        a(f"ds_read_b128 v[{36+8*r}:{39+8*r}], v6 offset:{QP+512*(4*half+r)+16}")
    a("s_waitcnt lgkmcnt(0)")
    for i in range(8):
        a(f"v_add_f32 v{32+i}, v{32+i}, v{40+i}\nv_add_f32 v{48+i}, v{48+i}, v{56+i}")
    for i in range(8):
        if half == 0: a(f"v_add_f32 v{ACC+i}, v{32+i}, v{48+i}")
        else: a(f"v_add_f32 v{32+i}, v{32+i}, v{48+i}\nv_add_f32 v{ACC+i}, v{ACC+i}, v{32+i}")
for i in range(4):
    a(f"v_cvt_pk_bf16_f32 v{QR+i}, v{ACC+2*i}, v{ACC+2*i+1}")
for j in range(16): a(f"v_mov_b32 v{S+j}, 0")
for i in range(4):
    for j in range(16):
        a(f"v_dot2c_f32_bf16 v{S+j}, v{KB+4*j+i}, v{QR+i}")
for i in range(8):
    a(f"v_add_f32_dpp v{S+i}, v{S+i}, v{S+i} row_ror:8 row_mask:0xf bank_mask:0x3")
    a(f"v_add_f32_dpp v{S+i}, v{S+i+8}, v{S+i+8} row_ror:8 row_mask:0xf bank_mask:0xc")
for i in range(4):
    a(f"v_add_f32_dpp v{S+i}, v{S+i}, v{S+i} row_half_mirror row_mask:0xf bank_mask:0x5")
    a(f"v_add_f32_dpp v{S+i}, v{S+i+4}, v{S+i+4} row_half_mirror row_mask:0xf bank_mask:0xa")
a(f"""
v_cndmask_b32 v{S+4}, v{S}, v{S+2}, s[30:31]
v_cndmask_b32 v{S+5}, v{S+2}, v{S}, s[30:31]
v_cndmask_b32 v{S+6}, v{S+1}, v{S+3}, s[30:31]
v_cndmask_b32 v{S+7}, v{S+3}, v{S+1}, s[30:31]
v_add_f32_dpp v{S}, v{S+5}, v{S+4} quad_perm:[2,3,0,1] {DPPM}
v_add_f32_dpp v{S+1}, v{S+7}, v{S+6} quad_perm:[2,3,0,1] {DPPM}
v_cndmask_b32 v{S+2}, v{S}, v{S+1}, s[52:53]
v_cndmask_b32 v{S+3}, v{S+1}, v{S}, s[52:53]
v_add_f32_dpp v{S}, v{S+3}, v{S+2} quad_perm:[1,0,3,2] {DPPM}
""")
rbf(v(S), v(S))
a(f"v_mul_f32 v{S}, {SCALE:#x}, v{S}")
rbf(v(S), v(S))
a(f"v_mov_b32 v{S+1}, v{S}")
row_allreduce("v_max_f32", v(S+1))
rows_allreduce("v_max_f32", v(S+1), v(S+2))
a(f"""
s_lshl_b32 s38, s3, 2
v_mov_b32 v6, s38
ds_write_b32 v6, v{S+1} offset:{MAXA}
s_waitcnt lgkmcnt(0)
s_barrier
v_and_b32 v7, 7, v0
v_lshlrev_b32 v7, 2, v7
ds_read_b32 v{S+1}, v7 offset:{MAXA}
s_waitcnt lgkmcnt(0)
""")
row_allreduce("v_max_f32", v(S+1), (4, 2, 1))
PL, PH = S + 2, S + 3
a(f"""
v_mov_b32 v{MX}, v{S+1}
v_sub_f32 v{S}, v{S}, v{S+1}
v_mul_f32 v{S}, {LOG2E:#x}, v{S}
v_exp_f32 v{S}, v{S}
v_cvt_pk_bf16_f32 v{PL}, v{S}, 0
v_cvt_pk_bf16_f32 v{PH}, 0, v{S}
""")
row_allreduce("v_add_f32", v(S))
rows_allreduce("v_add_f32", v(S), v(S+4))
a(f"ds_write_b32 v6, v{S} offset:{LRED}")
stamp(3)
a(f"""
s_lshl_b32 s38, s3, 4
v_lshl_add_u32 v5, v15, 1, s38                ; 16w + 2g
s_movk_i32 s39, 1280
v_mul_lo_u32 v5, v5, s39
v_lshl_add_u32 v5, v3, 4, v5
s_lshl_b32 s38, s3, 3
v_lshl_add_u32 v2, v15, 1, s38
v_mul_lo_u32 v6, v2, s39
v_lshl_add_u32 v6, v3, 4, v6
v_cndmask_b32 v6, 0, v6, s[50:51]
s_mul_i32 s38, s28, {128*1280}
s_mul_i32 s40, s29, 160
s_add_u32 s38, s38, s40
s_add_u32 s12, s12, s38
s_addc_u32 s13, s13, 0
s_mul_i32 s38, s46, {64*1280}
s_add_u32 s38, s38, s40
s_add_u32 s20, s20, s38
s_addc_u32 s21, s21, 0
s_add_u32 s40, s12, {8*1280}
s_addc_u32 s41, s13, 0
""")
for i in range(8): a(f"v_mov_b32 v{ACC+i}, 0")
for j in range(16):
    it = ("v", j)
    if j > B2_AT: wait_for(it)
    refill(("v", max(j, B2_AT)))
    for i in range(4):
        a(f"v_dot2c_f32_bf16_dpp v{ACC+2*i}, v{PL}, v{VB+4*j+i} row_newbcast:{j} {DPPM}")
        a(f"v_dot2c_f32_bf16_dpp v{ACC+2*i+1}, v{PH}, v{VB+4*j+i} row_newbcast:{j} {DPPM}")
while issued[0] < len(stream): issue_next()
reduce8_g(ACC)
a(f"""
s_lshl_b32 s38, s3, 9
v_add_u32 v5, s38, v4
ds_write_b64 v5, v[{ACC}:{ACC+1}] offset:{RED2}
s_waitcnt lgkmcnt(0)
s_barrier
""")
stamp(4)
def sum_publish(RED, stride, off):
    a(f"""
v_and_b32 v6, 31, v0
v_lshrrev_b32 v7, 5, v0
v_mul_u32_u24 v7, {4*stride}, v7
v_lshl_add_u32 v7, v6, 2, v7
s_lshl_b32 s38, s3, 7
v_add_u32 v7, s38, v7
ds_read_b32 v48, v7 offset:{RED}
ds_read_b32 v49, v7 offset:{RED+stride}
ds_read_b32 v50, v7 offset:{RED+2*stride}
ds_read_b32 v51, v7 offset:{RED+3*stride}
v_lshl_add_u32 v6, v6, 2, s38
s_waitcnt lgkmcnt(0)
v_add_f32 v48, v48, v49
v_add_f32 v50, v50, v51
v_add_f32 v48, v48, v50
v_mov_b32 v49, v48
v_permlane32_swap_b32 v48, v49
v_add_f32 v48, v48, v49
v_min_u32 v48, 0xfffffffe, v48
s_mov_b64 s[32:33], exec
s_mov_b64 exec, s[54:55]
global_store_dword v6, v48, s[44:45] offset:{off} sc1
s_mov_b64 exec, s[32:33]
""")
a(f"""
s_cmp_gt_u32 s3, 4
s_cbranch_scc1 L_pub1done
s_cmp_eq_u32 s3, 4
s_cbranch_scc1 L_publ
""")
sum_publish(RED2, 512, R_O)
a("s_branch L_pub1done")
a.label("L_publ")
a(f"""
v_and_b32 v7, 7, v0
v_lshlrev_b32 v7, 2, v7
ds_read_b32 v49, v7 offset:{LRED}
s_waitcnt lgkmcnt(0)
""")
row_allreduce("v_add_f32", "v49", (4, 2, 1))
a(f"""
v_min_u32 v48, 0xfffffffe, v{MX}
v_min_u32 v49, 0xfffffffe, v49
v_cmp_eq_u32 vcc, 0, v0
s_and_saveexec_b64 s[32:33], vcc
global_store_dwordx2 v97, v[48:49], s[44:45] offset:{R_ML} sc1
s_mov_b64 exec, s[32:33]
""")
a.label("L_pub1done")
a(f"""
v_lshrrev_b32 v6, 1, v3
v_mul_u32_u24 v6, {32*REC}, v6
v_and_b32 v7, 1, v3
v_lshl_add_u32 v8, v7, 8, v6
v_lshl_add_u32 v8, v2, 2, v8
v_lshl_add_u32 v9, v7, 2, v15
s_lshl_b32 s38, s3, 6
v_lshl_add_u32 v9, v9, 3, s38
v_add_u32 v9, v9, v6                          ; o addr
s_mov_b32 s47, 0
""")
a.label("L_poll_g")
a(f"""
global_load_dwordx2 v[48:49], v8, s[48:49] offset:{R_GLU} sc1
s_waitcnt vmcnt(0)
v_max_u32 v50, v48, v49
v_cmp_eq_u32 vcc, -1, v50
s_cbranch_vccz L_poll_g_ok
s_add_u32 s47, s47, 1
s_cmp_lt_u32 s47, {SPIN_MAX}
s_cbranch_scc1 L_poll_g
""")
a.label("L_poll_g_ok")
for r in (8, 4, 2):
    a(f"v_add_f32_dpp v48, v48, v48 row_ror:{r} {DPPM}\nv_add_f32_dpp v49, v49, v49 row_ror:{r} {DPPM}")
rbf("v48", "v48"); rbf("v49", "v49")
for i, src in enumerate(("v48", "v49")):
    g_, u_, t0, t1, t2 = 50 + 5*i, 51 + 5*i, 52 + 5*i, 53 + 5*i, 54 + 5*i
    a(f"""
v_mov_b32_dpp v{g_}, {src} quad_perm:[0,0,2,2] {DPPM}
v_mov_b32_dpp v{u_}, {src} quad_perm:[1,1,3,3] {DPPM}
v_mul_f32 v{g_}, {LOG2E ^ 0x80000000:#x}, v{g_}
v_min_f32 v{g_}, 0x42fc0000, v{g_}
v_exp_f32 v{g_}, v{g_}
v_add_f32 v{g_}, 1.0, v{g_}
v_rcp_f32 v{t0}, v{g_}
v_fma_f32 v{t1}, -v{t0}, v{g_}, 1.0
v_fma_f32 v{t0}, v{t1}, v{t0}, v{t0}
""")
    rbf(v(t0), v(t0))
    a(f"""
v_mul_f32 v{t0}, v{t0}, v{u_}
v_cndmask_b32 v{t0}, 0, v{t0}, s[50:51]
v_cvt_pk_bf16_f32 v{t1}, v{t0}, 0
v_cvt_pk_bf16_f32 v{t2}, 0, v{t0}
""")
    for k in range(4):
        a(f"v_cndmask_b32 v{TL+16+4*i+k}, 0, v{TL+16+4*i+k}, s[50:51]")
for i in range(16): a(f"v_mov_b32 v{ACC+i}, 0")
for i in range(2):
    for k in range(4):
        a(f"v_dot2c_f32_bf16 v{AC2+2*k}, v{53+5*i}, v{TL+16+4*i+k}")
        a(f"v_dot2c_f32_bf16 v{AC2+2*k+1}, v{54+5*i}, v{TL+16+4*i+k}")
a("s_mov_b32 s47, 0")
a.label("L_poll_o")
a(f"""
global_load_dwordx2 v[48:49], v9, s[48:49] offset:{R_O} sc1
global_load_dwordx2 v[50:51], v6, s[48:49] offset:{R_ML} sc1
s_waitcnt vmcnt(0)
v_max_u32 v52, v48, v49
v_max3_u32 v52, v52, v50, v51
v_cmp_eq_u32 vcc, -1, v52
s_cbranch_vccz L_poll_o_ok
s_add_u32 s47, s47, 1
s_cmp_lt_u32 s47, {SPIN_MAX}
s_cbranch_scc1 L_poll_o
""")
a.label("L_poll_o_ok")
stamp(5)
a("v_mov_b32 v52, v50")
row_allreduce("v_max_f32", "v52", (8, 4, 2))
a(f"""
v_sub_f32 v50, v50, v52
v_mul_f32 v50, {LOG2E:#x}, v50
v_exp_f32 v50, v50
v_mul_f32 v51, v51, v50
v_mul_f32 v48, v48, v50
v_mul_f32 v49, v49, v50
""")
for r in (8, 4, 2):
    for x in (51, 48, 49):
        a(f"v_add_f32_dpp v{x}, v{x}, v{x} row_ror:{r} {DPPM}")
a(f"""
v_rcp_f32 v52, v51
v_mul_f32 v53, v48, v52
v_mul_f32 v54, v49, v52
v_fma_f32 v55, -v53, v51, v48
v_fma_f32 v56, -v54, v51, v49
v_fma_f32 v53, v55, v52, v53
v_fma_f32 v54, v56, v52, v54
v_cvt_pk_bf16_f32 v55, v53, 0
v_cvt_pk_bf16_f32 v56, 0, v53
v_cvt_pk_bf16_f32 v57, v54, 0
v_cvt_pk_bf16_f32 v58, 0, v54
""")
for j in range(4):
    lo = 55 + 2*(j & 1)
    for i in range(4):
        a(f"v_dot2c_f32_bf16_dpp v{ACC+2*i}, v{lo}, v{TL+4*j+i} row_newbcast:{j>>1} {DPPM}")
        a(f"v_dot2c_f32_bf16_dpp v{ACC+2*i+1}, v{lo+1}, v{TL+4*j+i} row_newbcast:{j>>1} {DPPM}")
for i in range(8): a(f"v_permlane32_swap_b32 v{ACC+i}, v{AC2+i}")
for i in range(8): a(f"v_add_f32 v{ACC+i}, v{ACC+i}, v{AC2+i}")
for i in range(4): a(f"v_permlane16_swap_b32 v{ACC+i}, v{ACC+i+4}")
for i in range(4): a(f"v_add_f32 v{ACC+i}, v{ACC+i}, v{ACC+i+4}")
a(f"""
v_lshrrev_b32 v6, 1, v15
v_mul_u32_u24 v6, 320, v6
v_lshl_add_u32 v6, v3, 5, v6
v_and_b32 v7, 1, v15
v_lshl_add_u32 v6, v7, 4, v6
s_mul_i32 s38, s3, 640
v_add_u32 v6, s38, v6
s_mov_b64 s[32:33], exec
s_mov_b64 exec, s[34:35]
ds_write_b128 v6, v[{ACC}:{ACC+3}] offset:{RED3}
s_mov_b64 exec, s[32:33]
s_waitcnt lgkmcnt(0)
s_barrier
s_cmp_gt_u32 s3, 4
s_cbranch_scc1 L_pub2done
""")
sum_publish(RED3, 640, R_Y)
a.label("L_pub2done")
stamp(6)
a(f"""
s_cmp_lg_u32 s28, s29
s_cbranch_scc1 L_fin_end
s_mul_i32 s38, s29, {32*REC}
s_mul_i32 s39, s3, {4*REC}
s_add_u32 s38, s38, s39
s_add_u32 s40, s26, s38
s_addc_u32 s41, s27, 0
s_add_u32 s42, s40, {2*REC}
s_addc_u32 s43, s41, 0
s_lshl_b32 s38, s28, 2
s_sub_u32 s24, s24, s38
s_subb_u32 s25, s25, 0
v_lshlrev_b32 v6, 4, v0
s_mul_i32 s38, s29, 160
s_lshl_b32 s39, s3, 5
s_add_u32 s38, s38, s39
v_lshl_add_u32 v8, v3, 1, s38
v_min_u32 v8, 1278, v8
global_load_ushort v9, v8, s[4:5]
v_and_b32 v7, 31, v0
v_lshlrev_b32 v7, 2, v7
s_mov_b32 s47, 0
""")
a.label("L_poll_c")
a(f"""
global_load_dword v48, v7, s[24:25] sc1
s_waitcnt vmcnt(0)
v_cmp_gt_u32 vcc, 8, v48
s_cbranch_vccz L_poll_c_ok
s_add_u32 s47, s47, 1
s_cmp_lt_u32 s47, {SPIN_MAX}
s_cbranch_scc1 L_poll_c
""")
a.label("L_poll_c_ok")
a(f"""
v_cmp_gt_u32 vcc, 40, v0
s_and_saveexec_b64 s[32:33], vcc
s_mov_b32 s47, 0
""")
a.label("L_poll_y")
a(f"""
global_load_dwordx4 v[24:27], v6, s[40:41] offset:{R_Y} sc1
global_load_dwordx4 v[28:31], v6, s[40:41] offset:{R_Y+REC} sc1
global_load_dwordx4 v[32:35], v6, s[42:43] offset:{R_Y} sc1
global_load_dwordx4 v[36:39], v6, s[42:43] offset:{R_Y+REC} sc1
s_waitcnt vmcnt(0)
v_max3_u32 v48, v24, v25, v26
v_max3_u32 v49, v27, v28, v29
v_max3_u32 v50, v30, v31, v32
v_max3_u32 v51, v33, v34, v35
v_max3_u32 v52, v36, v37, v38
v_max3_u32 v48, v48, v49, v39
v_max3_u32 v50, v50, v51, v52
v_max_u32 v48, v48, v50
v_cmp_eq_u32 vcc, -1, v48
s_cbranch_vccz L_poll_y_ok
s_add_u32 s47, s47, 1
s_cmp_lt_u32 s47, {SPIN_MAX}
s_cbranch_scc1 L_poll_y
""")
a.label("L_poll_y_ok")
for i in range(4):
    a(f"v_add_f32 v{24+i}, v{24+i}, v{28+i}\nv_add_f32 v{32+i}, v{32+i}, v{36+i}")
for i in range(4):
    a(f"v_add_f32 v{24+i}, v{24+i}, v{32+i}")
a(f"""
s_mul_i32 s38, s3, 640
v_add_u32 v7, s38, v6
ds_write_b128 v7, v[24:27] offset:{RED4}
s_mov_b64 exec, s[32:33]
s_waitcnt lgkmcnt(0)
s_barrier
s_cmp_gt_u32 s3, 4
s_cbranch_scc1 L_fin_end
v_lshrrev_b32 v6, 1, v15
v_mul_u32_u24 v6, 320, v6
v_and_b32 v7, 1, v15
v_mul_u32_u24 v7, {4*640}, v7
v_add_u32 v6, v6, v7
v_lshl_add_u32 v6, v3, 2, v6
s_lshl_b32 s38, s3, 6
v_add_u32 v6, s38, v6
ds_read_b32 v48, v6 offset:{RED4}
ds_read_b32 v49, v6 offset:{RED4+640}
ds_read_b32 v50, v6 offset:{RED4+1280}
ds_read_b32 v51, v6 offset:{RED4+1920}
s_waitcnt lgkmcnt(0)
v_add_f32 v48, v48, v49
v_add_f32 v50, v50, v51
v_add_f32 v48, v48, v50
v_mov_b32 v49, v48
v_permlane16_swap_b32 v48, v49
v_add_f32 v48, v48, v49
""")
rbf("v48", "v48")
a(f"""
v_mov_b32 v49, v48
v_permlane32_swap_b32 v48, v49
v_lshlrev_b32 v9, 16, v9
v_add_f32 v48, v9, v48
""")
rbf("v48", "v48")
a(f"""
v_add_f32 v48, v48, v49
v_cvt_pk_bf16_f32 v48, v48, 0
v_cmp_gt_u32 vcc, 16, v0
s_and_saveexec_b64 s[32:33], vcc
global_store_short v8, v48, s[22:23]
s_mov_b64 exec, s[32:33]
""")
a.label("L_fin_end")
stamp(7)
if STAMPS:
    a(f"""
s_waitcnt lgkmcnt(0)
s_cmp_lg_u32 s3, {STAMPWAVE}
s_cbranch_scc1 L_end
v_cmp_eq_u32 vcc, 0, v0
s_and_saveexec_b64 s[32:33], vcc
s_mul_i32 s38, s2, {NST*8}
s_add_u32 s38, s38, {STAMP_OFF}
v_mov_b32 v1, s38
""")
    for i in range(NST):
        a(f"v_mov_b32 v2, s{60+2*i}\nv_mov_b32 v3, s{61+2*i}\nglobal_store_dwordx2 v1, v[2:3], s[26:27] offset:{8*i}")
a.label("L_end")
a("s_endpgm")

hdr = open("parallel_sum__sliding_block_cached__glu_gated_glu__decode.s.ref").read().split("; Override")[0]
out = hdr + f"""; Override launch geometry by editing the next line (default: block=256,
; grid=ceil(out_elems/256), lds=0). Harness parses it; keep it on one line.
; @launch grid=(256,1,1) block=(512,1,1) lds={LDS_BYTES}
.amdgcn_target "amdgcn-amd-amdhsa--gfx950"
.text
.globl {NAME}
.p2align 8
.type {NAME},@function
{NAME}:
""" + a.render() + f""".section .rodata,"a"
.p2align 6
.amdhsa_kernel {NAME}
  .amdhsa_next_free_vgpr {NVGPR}
  .amdhsa_next_free_sgpr 102
  .amdhsa_accum_offset {NVGPR}
  .amdhsa_group_segment_fixed_size 0
  .amdhsa_kernarg_size 96
  .amdhsa_user_sgpr_count 2
  .amdhsa_user_sgpr_kernarg_segment_ptr 1
  .amdhsa_system_sgpr_workgroup_id_x 1
.end_amdhsa_kernel
"""
open(sys.argv[1], "w").write(out)
```

```python
import sys, os
from asmlib import Asm
NAME = "parallel_sum__sliding_block_cached__glu_gated_glu__decode_kernel"
STAMPS = int(os.environ.get("STAMPS", "0"))
STAMPWAVE = int(os.environ.get("STAMPWAVE", "0"))
D = int(os.environ.get("DEPTH", "6"))
TOPUP = int(os.environ.get("TOPUP", "0"))
NOEX = int(os.environ.get("NOEX", "0"))
KINIT = int(os.environ.get("KINIT", "4"))
B2_AT = int(os.environ.get("B2_AT", "8"))
NST = 8
XN = 0
RED1 = 1280; R1S = 784
QP = RED1 + 8 * R1S
MAXA = QP + 4096
LRED = MAXA + 64
RED2 = LRED + 64
RED3 = RED2 + 4096
RED4 = RED3 + 5120
LDS_BYTES = RED4 + 5120
assert QP % 16 == 0 and RED3 % 16 == 0 and RED4 % 16 == 0
REC = 2304
R_O = 0; R_ML = 512; R_GLU = 640; R_Y = 1152; R_Q = 1792
STAMP_OFF = 1 << 20
LOG2E = 0x3fb8aa3b
SCALE = 0x3db504f3
SPIN_MAX = 200000

a = Asm()
def stamp(i):
    if STAMPS: a(f"s_memrealtime s[{60+2*i}:{61+2*i}]")
def v(n): return f"v{n}"
def v4(n): return f"v[{n}:{n+3}]"
DPPM = "row_mask:0xf bank_mask:0xf"
def rows_allreduce(op, x, t):
    a(f"v_mov_b32 {t}, {x}\nv_permlane32_swap_b32 {x}, {t}\n{op} {x}, {x}, {t}")
    a(f"v_mov_b32 {t}, {x}\nv_permlane16_swap_b32 {x}, {t}\n{op} {x}, {x}, {t}")
def row_allreduce(op, x, rors=(8, 4, 2, 1)):
    for r in rors: a(f"{op}_dpp {x}, {x}, {x} row_ror:{r} {DPPM}")
def rbf(dst, src): a(f"v_cvt_pk_bf16_f32 {dst}, 0, {src}")
def reduce8_g(A):
    for i in range(4): a(f"v_permlane32_swap_b32 v{A+i}, v{A+i+4}")
    for i in range(4): a(f"v_add_f32 v{A+i}, v{A+i}, v{A+i+4}")
    for i in range(2): a(f"v_permlane16_swap_b32 v{A+i}, v{A+i+2}")
    for i in range(2): a(f"v_add_f32 v{A+i}, v{A+i}, v{A+i+2}")

XA_l, XA_h = 12, 13
XG = 17
MX = 23
ACC = 24
S = 32; AC2 = 32
WB = 64
GL = 76
TL = 64
QR = 88
PQ = 92
KB = 112
VB = 176
NVGPR = 240

a("s_load_dwordx16 s[4:19], s[0:1], 0\ns_load_dwordx8 s[20:27], s[0:1], 64")
stamp(0)
a(f"""
s_cmp_ge_u32 s2, 256
s_cbranch_scc1 L_end
s_and_b32 s28, s2, 31
s_lshr_b32 s29, s2, 5
v_lshrrev_b32 v2, 6, v0
v_and_b32 v0, 63, v0
v_readfirstlane_b32 s3, v2
v_lshlrev_b32 v1, 4, v0
v_lshl_add_u32 v1, v2, 10, v1                 ; kv offset = w*1024 + l*16
v_lshrrev_b32 v15, 4, v0                      ; g
v_and_b32 v3, 15, v0                          ; c
v_mul_u32_u24 v5, 10, v2
v_add_u32 v5, v5, v15                         ; 10w+g
v_lshlrev_b32 v10, 13, v5
v_lshl_add_u32 v10, v3, 4, v10
v_mul_u32_u24 v9, 20, v0
v_lshrrev_b32 v6, 3, v0                       ; r
s_movk_i32 s39, 3456
v_mul_lo_u32 v11, v6, s39
v_and_b32 v7, 7, v0
v_lshl_add_u32 v11, v7, 4, v11
v_mov_b32 v97, 0
v_cmp_gt_u32 s[34:35], 10, v3
v_cmp_gt_u32 s[36:37], 4, v6                  ; r<4
v_cmp_gt_u32 s[54:55], 32, v0                 ; lanes<32 (g<2)
v_and_b32 v7, 2, v0
v_cmp_ne_u32 s[30:31], 0, v7
v_and_b32 v7, 1, v0
v_cmp_ne_u32 s[52:53], 0, v7
s_lshl_b32 s38, s28, 23
s_lshl_b32 s39, s29, 17
s_add_u32 s38, s38, s39
s_add_u32 s38, s38, 7340032
s_min_u32 s46, s28, 26
s_lshl_b32 s40, s46, 7
s_lshl_b32 s41, s28, 8
s_mul_i32 s42, s29, {80*8192}
s_add_u32 s41, s41, s42
s_mul_i32 s42, s2, {REC}
s_mul_i32 s43, s28, {REC}
s_and_b32 s58, s3, 3
s_mul_i32 s58, s58, 20
s_mul_i32 s59, s29, 80
s_add_u32 s58, s58, s59
s_mul_i32 s59, s58, 3456
s_add_u32 s59, s59, s40
s_cmp_lt_u32 s28, 27
s_cselect_b64 s[50:51], -1, 0
v_cndmask_b32 v11, 0, v11, s[50:51]
s_waitcnt lgkmcnt(0)
s_add_u32 s44, s26, s42
s_addc_u32 s45, s27, 0
s_cmp_lg_u32 s3, 0
s_cbranch_scc1 L_noclear
v_mov_b32 v56, -1
v_mov_b32 v57, -1
v_mov_b32 v58, -1
v_mov_b32 v59, -1
v_lshlrev_b32 v60, 4, v0
global_store_dwordx4 v60, v[56:59], s[44:45] sc1
global_store_dwordx4 v60, v[56:59], s[44:45] offset:1024 sc1
v_cmp_gt_u32 vcc, 16, v0
s_and_saveexec_b64 s[32:33], vcc
global_store_dwordx4 v60, v[56:59], s[44:45] offset:2048 sc1
s_mov_b64 exec, s[32:33]
""")
a.label("L_noclear")
a(f"""
global_load_dwordx4 v[48:51], v9, s[4:5]
global_load_dword v52, v9, s[4:5] offset:16
s_add_u32 s6, s6, s38
s_addc_u32 s7, s7, 0
s_add_u32 s8, s8, s38
s_addc_u32 s9, s9, 0
s_add_u32 s10, s10, s41
s_addc_u32 s11, s11, 0
s_cmp_ge_u32 s3, 4
s_cselect_b32 s56, s18, s16
s_cselect_b32 s57, s19, s17
s_add_u32 s56, s56, s59
s_addc_u32 s57, s57, 0
s_add_u32 s48, s26, s43
s_addc_u32 s49, s27, 0
s_lshl_b32 s38, s28, 2
s_add_u32 s24, s24, s38                       ; &cnt[h]
s_addc_u32 s25, s25, 0
""")
stream = [("w", j) for j in range(3)] + [("g", i) for i in range(3)]
stream += [("k", j) for j in range(16)] + [("v", j) for j in range(16)] + [("t", j) for j in range(6)]
issued = [0]
extra = []
order = []
def issue_next():
    if issued[0] >= len(stream): return
    kind, j = stream[issued[0]]
    order.append((kind, j))
    issued[0] += 1
    if kind == "w":
        if j == 2: a("s_mov_b64 s[32:33], exec\ns_mov_b64 exec, s[54:55]")
        a(f"global_load_dwordx4 {v4(WB+4*j)}, v10, s[10:11] nt")
        if j == 2: a("s_mov_b64 exec, s[32:33]")
        else: a("s_add_u32 s10, s10, 32768\ns_addc_u32 s11, s11, 0")
    elif kind in "kv":
        lo = 6 if kind == "k" else 8
        B = KB if kind == "k" else VB
        a(f"global_load_dwordx4 {v4(B+4*j)}, v1, s[{lo}:{lo+1}] nt")
        if j < 15: a(f"s_add_u32 s{lo}, s{lo}, 8192\ns_addc_u32 s{lo+1}, s{lo+1}, 0")
    elif kind == "g":
        if j == 2: a("s_mov_b64 s[32:33], exec\ns_mov_b64 exec, s[36:37]")
        a(f"global_load_dwordx4 {v4(GL+4*j)}, v11, s[56:57] nt")
        if j == 2: a("s_mov_b64 exec, s[32:33]")
        else: a(f"s_add_u32 s56, s56, {8*3456}\ns_addc_u32 s57, s57, 0")
    elif kind == "t":
        a("s_mov_b64 s[32:33], exec\ns_mov_b64 exec, s[34:35]")
        if j < 4:
            a(f"global_load_dwordx4 {v4(TL+4*j)}, v98, s[{12 if j < 2 else 14}:{13 if j < 2 else 15}] offset:{(j&1)*1280} nt")
        else:
            a(f"global_load_dwordx4 {v4(TL+4*j)}, v99, s[20:21] offset:{(j&1)*1280} nt")
        a("s_mov_b64 exec, s[32:33]")
def wait_for(item):
    i = order.index(item)
    a(f"s_waitcnt vmcnt({len(order) - 1 - i})")
def refill(done_item):
    i = order.index(done_item)
    while issued[0] < len(stream) and len(order) - 1 - i < D:
        issue_next()

for _ in range(6 + KINIT): issue_next()
a(f"s_waitcnt vmcnt({6 + KINIT})")
stamp(1)
a(f"""
s_cmp_lg_u32 s3, 0
s_cbranch_scc1 L_nosig
v_mov_b32 v57, 1
v_cmp_eq_u32 vcc, 0, v0
s_and_saveexec_b64 s[32:33], vcc
global_atomic_add v97, v57, s[24:25] sc1
s_mov_b64 exec, s[32:33]
""")
a.label("L_nosig")
for k in range(5):
    a(f"v_lshlrev_b32 v{24+k}, 16, v{48+k}\nv_and_b32 v{32+k}, 0xffff0000, v{48+k}")
a("""
v_add_f32 v53, v24, v32
v_add_f32 v54, v25, v33
v_add_f32 v55, v26, v34
v_add_f32 v56, v27, v35
v_add_f32 v57, v28, v36
v_add_f32 v53, v53, v54
v_add_f32 v55, v55, v56
v_add_f32 v53, v53, v57
v_add_f32 v53, v53, v55
""")
row_allreduce("v_add_f32", "v53")
rows_allreduce("v_add_f32", "v53", "v54")
a("v_mul_f32 v53, 0x3acccccd, v53")
XS = [24, 25, 26, 27, 28, 32, 33, 34, 35, 36]
a("v_sub_f32 v55, v24, v53\nv_mul_f32 v54, v55, v55")
for r in XS[1:]:
    a(f"v_sub_f32 v55, v{r}, v53\nv_fmac_f32 v54, v55, v55")
row_allreduce("v_add_f32", "v54")
rows_allreduce("v_add_f32", "v54", "v55")
a("v_mul_f32 v54, 0x3acccccd, v54")
rbf("v53", "v53"); rbf("v54", "v54")
a("v_add_f32 v54, 0x3727c5ac, v54")
rbf("v54", "v54")
a("""
v_sqrt_f32 v55, v54
v_rcp_f32 v56, v55
v_fma_f32 v57, -v55, v55, v54
v_mul_f32 v56, 0.5, v56
v_fma_f32 v55, v57, v56, v55
""")
rbf("v55", "v55")
a("v_rcp_f32 v56, v55")
for r in XS: a(f"v_sub_f32 v{r}, v{r}, v53")
for r in XS: rbf(v(r), v(r))
for r in XS:
    a(f"v_mul_f32 v57, v{r}, v56\nv_fma_f32 v58, -v57, v55, v{r}\nv_fma_f32 v{r}, v58, v56, v57")
for k in range(5): a(f"v_cvt_pk_bf16_f32 v{48+k}, v{24+k}, v{32+k}")
for k in range(5): a(f"ds_write_b32 v9, v{48+k} offset:{XN+4*k}")
a(f"""
s_mul_i32 s38, s3, 20
s_mul_i32 s39, s29, 160
s_add_u32 s38, s38, s39
v_lshlrev_b32 v5, 3, v3
v_lshl_add_u32 v5, v15, 1, v5
v_add_u32 v5, s38, v5                          ; 2*(80s + 10w + 4c + g)
ds_read_u16 v{XA_l}, v5 offset:{XN}
s_lshl_b32 s38, s58, 1
v_lshrrev_b32 v6, 3, v0
v_lshl_add_u32 v6, v6, 1, s38
ds_read_u16 v{XG}, v6 offset:{XN}
ds_read_u16 v{XG+2}, v6 offset:{XN+16}
ds_read_u16 v{XG+4}, v6 offset:{XN+32}
""")
for i in range(16): a(f"v_mov_b32 v{ACC+i}, 0")
a(f"""
s_waitcnt lgkmcnt(0)
v_lshlrev_b32 v{XA_h}, 16, v{XA_l}
v_lshlrev_b32 v{XG+1}, 16, v{XG}
v_lshlrev_b32 v{XG+3}, 16, v{XG+2}
v_lshlrev_b32 v{XG+5}, 16, v{XG+4}
""")
for j in range(3):
    wait_for(("w", j))
    if j == 2: a("s_mov_b64 s[32:33], exec\ns_mov_b64 exec, s[54:55]")
    for i in range(4):
        a(f"v_dot2c_f32_bf16_dpp v{ACC+2*i}, v{XA_l}, v{WB+4*j+i} row_newbcast:{j} {DPPM}")
        a(f"v_dot2c_f32_bf16_dpp v{ACC+2*i+1}, v{XA_h}, v{WB+4*j+i} row_newbcast:{j} {DPPM}")
    if j == 2: a("s_mov_b64 exec, s[32:33]")
    refill(("w", j))
reduce8_g(ACC)
a(f"""
v_lshlrev_b32 v4, 5, v3
v_lshl_add_u32 v4, v15, 3, v4
s_mul_i32 s38, s3, {R1S}
v_add_u32 v5, s38, v4
ds_write_b64 v5, v[{ACC}:{ACC+1}] offset:{RED1}
""")
for j in range(3):
    wait_for(("g", j))
    if j == 2: a("s_mov_b64 s[32:33], exec\ns_mov_b64 exec, s[36:37]")
    for i in range(4):
        a(f"v_dot2c_f32_bf16 v{AC2+2*i}, v{XG+2*j}, v{GL+4*j+i}")
        a(f"v_dot2c_f32_bf16 v{AC2+2*i+1}, v{XG+2*j+1}, v{GL+4*j+i}")
    if j == 2: a("s_mov_b64 exec, s[32:33]")
    refill(("g", j))
reduce8_g(AC2)
a(f"""
v_add_f32_dpp v{AC2}, v{AC2}, v{AC2} row_ror:8 row_mask:0xf bank_mask:0x3
v_add_f32_dpp v{AC2}, v{AC2+1}, v{AC2+1} row_ror:8 row_mask:0xf bank_mask:0xc
v_and_b32 v5, 7, v0
v_lshlrev_b32 v5, 5, v5
v_lshrrev_b32 v6, 5, v0
v_lshl_add_u32 v5, v6, 4, v5
v_bfe_u32 v6, v0, 4, 1
v_lshl_add_u32 v5, v6, 3, v5
v_bfe_u32 v6, v0, 3, 1
v_lshl_add_u32 v5, v6, 2, v5
s_mul_i32 s38, s3, {R1S}
v_add_u32 v5, s38, v5
ds_write_b32 v5, v{AC2} offset:{RED1+512}
s_waitcnt lgkmcnt(0)
s_barrier
v_and_b32 v6, 31, v0
v_lshrrev_b32 v7, 5, v0
s_cmp_ge_u32 s3, 4
s_cbranch_scc1 L_glupub
v_mul_u32_u24 v7, {4*R1S}, v7
v_lshl_add_u32 v7, v6, 2, v7
s_lshl_b32 s38, s3, 7
v_add_u32 v7, s38, v7
ds_read_b32 v48, v7 offset:{RED1}
ds_read_b32 v49, v7 offset:{RED1+R1S}
ds_read_b32 v50, v7 offset:{RED1+2*R1S}
ds_read_b32 v51, v7 offset:{RED1+3*R1S}
s_add_u32 s38, s38, {R_Q}
v_lshl_add_u32 v6, v6, 2, s38
s_waitcnt lgkmcnt(0)
v_add_f32 v48, v48, v49
v_add_f32 v50, v50, v51
v_add_f32 v48, v48, v50
s_branch L_pub0
""")
a.label("L_glupub")
a(f"""
v_mul_u32_u24 v7, {2*R1S}, v7
v_lshl_add_u32 v7, v6, 2, v7
s_and_b32 s38, s3, 1
s_lshl_b32 s38, s38, 7
s_bfe_u32 s39, s3, 0x10001
s_mul_i32 s40, s39, {4*R1S}
s_add_u32 s40, s40, s38
v_add_u32 v7, s40, v7
ds_read_b32 v48, v7 offset:{RED1+512}
ds_read_b32 v49, v7 offset:{RED1+512+R1S}
s_lshl_b32 s39, s39, 8
s_add_u32 s39, s39, s38
s_add_u32 s39, s39, {R_GLU}
v_lshl_add_u32 v6, v6, 2, s39
s_waitcnt lgkmcnt(0)
v_add_f32 v48, v48, v49
""")
a.label("L_pub0")
a(f"""
v_mov_b32 v49, v48
v_permlane32_swap_b32 v48, v49
v_add_f32 v48, v48, v49
v_min_u32 v48, 0xfffffffe, v48
s_mov_b64 s[32:33], exec
s_mov_b64 exec, s[54:55]
global_store_dword v6, v48, s[44:45] sc1
s_mov_b64 exec, s[32:33]
""")
order.append(("pub", 0))
stamp(2)
a(f"""
s_lshl_b32 s38, s3, 4
v_lshl_add_u32 v98, v15, 1, s38               ; 16w + 2g
s_movk_i32 s39, 1280
v_mul_lo_u32 v98, v98, s39
v_lshl_add_u32 v98, v3, 4, v98
s_lshl_b32 s38, s3, 3
v_lshl_add_u32 v2, v15, 1, s38
v_mul_lo_u32 v99, v2, s39
v_lshl_add_u32 v99, v3, 4, v99
v_cndmask_b32 v99, 0, v99, s[50:51]
s_mul_i32 s38, s28, {128*1280}
s_mul_i32 s40, s29, 160
s_add_u32 s38, s38, s40
s_add_u32 s12, s12, s38
s_addc_u32 s13, s13, 0
s_mul_i32 s38, s46, {64*1280}
s_add_u32 s38, s38, s40
s_add_u32 s20, s20, s38
s_addc_u32 s21, s21, 0
s_add_u32 s14, s12, {8*1280}
s_addc_u32 s15, s13, 0
""")
a(f"""
s_mul_i32 s38, s3, {32*REC}
s_add_u32 s42, s48, s38
s_addc_u32 s43, s49, 0
v_lshlrev_b32 v8, 4, v0
s_mov_b32 s58, {2 if NOEX else 0}
global_load_dword v96, v97, s[24:25] sc1
""")
def checkpoint(n, final=False):
    a(f"""
s_cmp_eq_u32 s58, 2
s_cbranch_scc1 L_ck{n}_skip
s_cmp_eq_u32 s58, 1
s_cbranch_scc1 L_ck{n}_data
v_readfirstlane_b32 s38, v96
s_cmp_ge_u32 s38, 8
s_cbranch_scc1 L_ck{n}_cntok
global_load_dword v96, v97, s[24:25] sc1
s_branch L_ck{n}_skip
""")
    a.label(f"L_ck{n}_data")
    a(f"""
s_mov_b64 s[32:33], exec
s_mov_b64 exec, s[54:55]
v_max_u32 v48, v{PQ}, v{PQ+1}
v_max3_u32 v48, v48, v{PQ+2}, v{PQ+3}
v_cmp_eq_u32 vcc, -1, v48
s_mov_b64 exec, s[32:33]
s_cbranch_vccnz L_ck{n}_cntok
s_mov_b32 s58, 2
s_branch L_ck{n}_skip
""")
    a.label(f"L_ck{n}_cntok")
    a(f"""
s_mov_b32 s58, 1
s_mov_b64 s[32:33], exec
s_mov_b64 exec, s[54:55]
global_load_dwordx4 {v4(PQ)}, v8, s[42:43] offset:{R_Q} sc1
s_mov_b64 exec, s[32:33]
""")
    a.label(f"L_ck{n}_skip")
kv_items = [("k", j) for j in range(16)] + [("v", j) for j in range(B2_AT + 1)]
mark = len(order)
nck = 0
for it in kv_items:
    if order.index(it) < order.index(("pub", 0)) and False: continue
    wait_for(it)
    if order.index(it) >= mark:
        checkpoint(nck); nck += 1
        mark = len(order)
    refill(it)
mark_n = len(order) - mark
for _ in range(TOPUP): issue_next()
a(f"s_cmp_eq_u32 s58, 2\ns_cbranch_scc1 L_pqok\ns_waitcnt vmcnt({len(order) - mark})")
checkpoint(nck); nck += 1
a("s_mov_b32 s47, 0")
a.label("L_pqloop")
a("s_waitcnt vmcnt(0)" if False else "")
a(f"""
s_cmp_eq_u32 s58, 2
s_cbranch_scc1 L_pqok
s_add_u32 s47, s47, 1
s_cmp_ge_u32 s47, {SPIN_MAX}
s_cbranch_scc1 L_pqok
s_waitcnt vmcnt(0)
""")
checkpoint(nck)
a("s_branch L_pqloop")
a.label("L_pqok")
a(f"""
s_mov_b64 s[32:33], exec
s_mov_b64 exec, s[54:55]
s_lshl_b32 s38, s3, 9
v_add_u32 v5, s38, v8
ds_write_b128 v5, {v4(PQ)} offset:{QP}
s_mov_b64 exec, s[32:33]
s_waitcnt lgkmcnt(0)
s_barrier
v_lshlrev_b32 v6, 5, v3
""")
for half in range(2):
    for r in range(4):
        a(f"ds_read_b128 v[{32+8*r}:{35+8*r}], v6 offset:{QP+512*(4*half+r)}")
        a(f"ds_read_b128 v[{36+8*r}:{39+8*r}], v6 offset:{QP+512*(4*half+r)+16}")
    a("s_waitcnt lgkmcnt(0)")
    for i in range(8):
        a(f"v_add_f32 v{32+i}, v{32+i}, v{40+i}\nv_add_f32 v{48+i}, v{48+i}, v{56+i}")
    for i in range(8):
        if half == 0: a(f"v_add_f32 v{ACC+i}, v{32+i}, v{48+i}")
        else: a(f"v_add_f32 v{32+i}, v{32+i}, v{48+i}\nv_add_f32 v{ACC+i}, v{ACC+i}, v{32+i}")
for i in range(4):
    a(f"v_cvt_pk_bf16_f32 v{QR+i}, v{ACC+2*i}, v{ACC+2*i+1}")
for j in range(16): a(f"v_mov_b32 v{S+j}, 0")
for i in range(4):
    for j in range(16):
        a(f"v_dot2c_f32_bf16 v{S+j}, v{KB+4*j+i}, v{QR+i}")
for i in range(8):
    a(f"v_add_f32_dpp v{S+i}, v{S+i}, v{S+i} row_ror:8 row_mask:0xf bank_mask:0x3")
    a(f"v_add_f32_dpp v{S+i}, v{S+i+8}, v{S+i+8} row_ror:8 row_mask:0xf bank_mask:0xc")
for i in range(4):
    a(f"v_add_f32_dpp v{S+i}, v{S+i}, v{S+i} row_half_mirror row_mask:0xf bank_mask:0x5")
    a(f"v_add_f32_dpp v{S+i}, v{S+i+4}, v{S+i+4} row_half_mirror row_mask:0xf bank_mask:0xa")
a(f"""
v_cndmask_b32 v{S+4}, v{S}, v{S+2}, s[30:31]
v_cndmask_b32 v{S+5}, v{S+2}, v{S}, s[30:31]
v_cndmask_b32 v{S+6}, v{S+1}, v{S+3}, s[30:31]
v_cndmask_b32 v{S+7}, v{S+3}, v{S+1}, s[30:31]
v_add_f32_dpp v{S}, v{S+5}, v{S+4} quad_perm:[2,3,0,1] {DPPM}
v_add_f32_dpp v{S+1}, v{S+7}, v{S+6} quad_perm:[2,3,0,1] {DPPM}
v_cndmask_b32 v{S+2}, v{S}, v{S+1}, s[52:53]
v_cndmask_b32 v{S+3}, v{S+1}, v{S}, s[52:53]
v_add_f32_dpp v{S}, v{S+3}, v{S+2} quad_perm:[1,0,3,2] {DPPM}
""")
rbf(v(S), v(S))
a(f"v_mul_f32 v{S}, {SCALE:#x}, v{S}")
rbf(v(S), v(S))
a(f"v_mov_b32 v{S+1}, v{S}")
row_allreduce("v_max_f32", v(S+1))
rows_allreduce("v_max_f32", v(S+1), v(S+2))
a(f"""
s_lshl_b32 s38, s3, 2
v_mov_b32 v6, s38
ds_write_b32 v6, v{S+1} offset:{MAXA}
s_waitcnt lgkmcnt(0)
s_barrier
v_and_b32 v7, 7, v0
v_lshlrev_b32 v7, 2, v7
ds_read_b32 v{S+1}, v7 offset:{MAXA}
s_waitcnt lgkmcnt(0)
""")
row_allreduce("v_max_f32", v(S+1), (4, 2, 1))
PL, PH = S + 2, S + 3
a(f"""
v_mov_b32 v{MX}, v{S+1}
v_sub_f32 v{S}, v{S}, v{S+1}
v_mul_f32 v{S}, {LOG2E:#x}, v{S}
v_exp_f32 v{S}, v{S}
v_cvt_pk_bf16_f32 v{PL}, v{S}, 0
v_cvt_pk_bf16_f32 v{PH}, 0, v{S}
""")
row_allreduce("v_add_f32", v(S))
rows_allreduce("v_add_f32", v(S), v(S+4))
a(f"ds_write_b32 v6, v{S} offset:{LRED}")
stamp(3)
for i in range(8): a(f"v_mov_b32 v{ACC+i}, 0")
for j in range(16):
    it = ("v", j)
    if j > B2_AT: wait_for(it)
    refill(("v", max(j, B2_AT)))
    for i in range(4):
        a(f"v_dot2c_f32_bf16_dpp v{ACC+2*i}, v{PL}, v{VB+4*j+i} row_newbcast:{j} {DPPM}")
        a(f"v_dot2c_f32_bf16_dpp v{ACC+2*i+1}, v{PH}, v{VB+4*j+i} row_newbcast:{j} {DPPM}")
while issued[0] < len(stream): issue_next()
reduce8_g(ACC)
a(f"""
s_lshl_b32 s38, s3, 9
v_add_u32 v5, s38, v4
ds_write_b64 v5, v[{ACC}:{ACC+1}] offset:{RED2}
s_waitcnt lgkmcnt(0)
s_barrier
""")
stamp(4)
def sum_publish(RED, stride, off):
    a(f"""
v_and_b32 v6, 31, v0
v_lshrrev_b32 v7, 5, v0
v_mul_u32_u24 v7, {4*stride}, v7
v_lshl_add_u32 v7, v6, 2, v7
s_lshl_b32 s38, s3, 7
v_add_u32 v7, s38, v7
ds_read_b32 v48, v7 offset:{RED}
ds_read_b32 v49, v7 offset:{RED+stride}
ds_read_b32 v50, v7 offset:{RED+2*stride}
ds_read_b32 v51, v7 offset:{RED+3*stride}
v_lshl_add_u32 v6, v6, 2, s38
s_waitcnt lgkmcnt(0)
v_add_f32 v48, v48, v49
v_add_f32 v50, v50, v51
v_add_f32 v48, v48, v50
v_mov_b32 v49, v48
v_permlane32_swap_b32 v48, v49
v_add_f32 v48, v48, v49
v_min_u32 v48, 0xfffffffe, v48
s_mov_b64 s[32:33], exec
s_mov_b64 exec, s[54:55]
global_store_dword v6, v48, s[44:45] offset:{off} sc1
s_mov_b64 exec, s[32:33]
""")
a(f"""
s_cmp_gt_u32 s3, 4
s_cbranch_scc1 L_pub1done
s_cmp_eq_u32 s3, 4
s_cbranch_scc1 L_publ
""")
sum_publish(RED2, 512, R_O)
a("s_branch L_pub1done")
a.label("L_publ")
a(f"""
v_and_b32 v7, 7, v0
v_lshlrev_b32 v7, 2, v7
ds_read_b32 v49, v7 offset:{LRED}
s_waitcnt lgkmcnt(0)
""")
row_allreduce("v_add_f32", "v49", (4, 2, 1))
a(f"""
v_min_u32 v48, 0xfffffffe, v{MX}
v_min_u32 v49, 0xfffffffe, v49
v_cmp_eq_u32 vcc, 0, v0
s_and_saveexec_b64 s[32:33], vcc
global_store_dwordx2 v97, v[48:49], s[44:45] offset:{R_ML} sc1
s_mov_b64 exec, s[32:33]
""")
a.label("L_pub1done")
a(f"""
v_lshrrev_b32 v6, 1, v3
v_mul_u32_u24 v6, {32*REC}, v6
v_and_b32 v7, 1, v3
v_lshl_add_u32 v8, v7, 8, v6
v_lshl_add_u32 v8, v2, 2, v8
v_lshl_add_u32 v9, v7, 2, v15
s_lshl_b32 s38, s3, 6
v_lshl_add_u32 v9, v9, 3, s38
v_add_u32 v9, v9, v6                          ; o addr
s_mov_b32 s47, 0
""")
a.label("L_poll_g")
a(f"""
global_load_dwordx2 v[48:49], v8, s[48:49] offset:{R_GLU} sc1
s_waitcnt vmcnt(0)
v_max_u32 v50, v48, v49
v_cmp_eq_u32 vcc, -1, v50
s_cbranch_vccz L_poll_g_ok
s_add_u32 s47, s47, 1
s_cmp_lt_u32 s47, {SPIN_MAX}
s_cbranch_scc1 L_poll_g
""")
a.label("L_poll_g_ok")
for r in (8, 4, 2):
    a(f"v_add_f32_dpp v48, v48, v48 row_ror:{r} {DPPM}\nv_add_f32_dpp v49, v49, v49 row_ror:{r} {DPPM}")
rbf("v48", "v48"); rbf("v49", "v49")
for i, src in enumerate(("v48", "v49")):
    g_, u_, t0, t1, t2 = 50 + 5*i, 51 + 5*i, 52 + 5*i, 53 + 5*i, 54 + 5*i
    a(f"""
v_mov_b32_dpp v{g_}, {src} quad_perm:[0,0,2,2] {DPPM}
v_mov_b32_dpp v{u_}, {src} quad_perm:[1,1,3,3] {DPPM}
v_mul_f32 v{g_}, {LOG2E ^ 0x80000000:#x}, v{g_}
v_min_f32 v{g_}, 0x42fc0000, v{g_}
v_exp_f32 v{g_}, v{g_}
v_add_f32 v{g_}, 1.0, v{g_}
v_rcp_f32 v{t0}, v{g_}
v_fma_f32 v{t1}, -v{t0}, v{g_}, 1.0
v_fma_f32 v{t0}, v{t1}, v{t0}, v{t0}
""")
    rbf(v(t0), v(t0))
    a(f"""
v_mul_f32 v{t0}, v{t0}, v{u_}
v_cndmask_b32 v{t0}, 0, v{t0}, s[50:51]
v_cvt_pk_bf16_f32 v{t1}, v{t0}, 0
v_cvt_pk_bf16_f32 v{t2}, 0, v{t0}
""")
    for k in range(4):
        a(f"v_cndmask_b32 v{TL+16+4*i+k}, 0, v{TL+16+4*i+k}, s[50:51]")
for i in range(16): a(f"v_mov_b32 v{ACC+i}, 0")
for i in range(2):
    for k in range(4):
        a(f"v_dot2c_f32_bf16 v{AC2+2*k}, v{53+5*i}, v{TL+16+4*i+k}")
        a(f"v_dot2c_f32_bf16 v{AC2+2*k+1}, v{54+5*i}, v{TL+16+4*i+k}")
a("s_mov_b32 s47, 0")
a.label("L_poll_o")
a(f"""
global_load_dwordx2 v[48:49], v9, s[48:49] offset:{R_O} sc1
global_load_dwordx2 v[50:51], v6, s[48:49] offset:{R_ML} sc1
s_waitcnt vmcnt(0)
v_max_u32 v52, v48, v49
v_max3_u32 v52, v52, v50, v51
v_cmp_eq_u32 vcc, -1, v52
s_cbranch_vccz L_poll_o_ok
s_add_u32 s47, s47, 1
s_cmp_lt_u32 s47, {SPIN_MAX}
s_cbranch_scc1 L_poll_o
""")
a.label("L_poll_o_ok")
stamp(5)
a("v_mov_b32 v52, v50")
row_allreduce("v_max_f32", "v52", (8, 4, 2))
a(f"""
v_sub_f32 v50, v50, v52
v_mul_f32 v50, {LOG2E:#x}, v50
v_exp_f32 v50, v50
v_mul_f32 v51, v51, v50
v_mul_f32 v48, v48, v50
v_mul_f32 v49, v49, v50
""")
for r in (8, 4, 2):
    for x in (51, 48, 49):
        a(f"v_add_f32_dpp v{x}, v{x}, v{x} row_ror:{r} {DPPM}")
a(f"""
v_rcp_f32 v52, v51
v_mul_f32 v53, v48, v52
v_mul_f32 v54, v49, v52
v_fma_f32 v55, -v53, v51, v48
v_fma_f32 v56, -v54, v51, v49
v_fma_f32 v53, v55, v52, v53
v_fma_f32 v54, v56, v52, v54
v_cvt_pk_bf16_f32 v55, v53, 0
v_cvt_pk_bf16_f32 v56, 0, v53
v_cvt_pk_bf16_f32 v57, v54, 0
v_cvt_pk_bf16_f32 v58, 0, v54
""")
for j in range(4):
    lo = 55 + 2*(j & 1)
    for i in range(4):
        a(f"v_dot2c_f32_bf16_dpp v{ACC+2*i}, v{lo}, v{TL+4*j+i} row_newbcast:{j>>1} {DPPM}")
        a(f"v_dot2c_f32_bf16_dpp v{ACC+2*i+1}, v{lo+1}, v{TL+4*j+i} row_newbcast:{j>>1} {DPPM}")
for i in range(8): a(f"v_permlane32_swap_b32 v{ACC+i}, v{AC2+i}")
for i in range(8): a(f"v_add_f32 v{ACC+i}, v{ACC+i}, v{AC2+i}")
for i in range(4): a(f"v_permlane16_swap_b32 v{ACC+i}, v{ACC+i+4}")
for i in range(4): a(f"v_add_f32 v{ACC+i}, v{ACC+i}, v{ACC+i+4}")
a(f"""
v_lshrrev_b32 v6, 1, v15
v_mul_u32_u24 v6, 320, v6
v_lshl_add_u32 v6, v3, 5, v6
v_and_b32 v7, 1, v15
v_lshl_add_u32 v6, v7, 4, v6
s_mul_i32 s38, s3, 640
v_add_u32 v6, s38, v6
s_mov_b64 s[32:33], exec
s_mov_b64 exec, s[34:35]
ds_write_b128 v6, v[{ACC}:{ACC+3}] offset:{RED3}
s_mov_b64 exec, s[32:33]
s_waitcnt lgkmcnt(0)
s_barrier
s_cmp_gt_u32 s3, 4
s_cbranch_scc1 L_pub2done
""")
sum_publish(RED3, 640, R_Y)
a.label("L_pub2done")
stamp(6)
a(f"""
s_cmp_lg_u32 s28, s29
s_cbranch_scc1 L_fin_end
s_mul_i32 s38, s29, {32*REC}
s_mul_i32 s39, s3, {4*REC}
s_add_u32 s38, s38, s39
s_add_u32 s40, s26, s38
s_addc_u32 s41, s27, 0
s_add_u32 s42, s40, {2*REC}
s_addc_u32 s43, s41, 0
s_lshl_b32 s38, s28, 2
s_sub_u32 s24, s24, s38
s_subb_u32 s25, s25, 0
v_lshlrev_b32 v6, 4, v0
s_mul_i32 s38, s29, 160
s_lshl_b32 s39, s3, 5
s_add_u32 s38, s38, s39
v_lshl_add_u32 v8, v3, 1, s38
v_min_u32 v8, 1278, v8
global_load_ushort v9, v8, s[4:5]
v_and_b32 v7, 31, v0
v_lshlrev_b32 v7, 2, v7
s_mov_b32 s47, 0
""")
a.label("L_poll_c")
a(f"""
global_load_dword v48, v7, s[24:25] sc1
s_waitcnt vmcnt(0)
v_cmp_gt_u32 vcc, 8, v48
s_cbranch_vccz L_poll_c_ok
s_add_u32 s47, s47, 1
s_cmp_lt_u32 s47, {SPIN_MAX}
s_cbranch_scc1 L_poll_c
""")
a.label("L_poll_c_ok")
a(f"""
v_cmp_gt_u32 vcc, 40, v0
s_and_saveexec_b64 s[32:33], vcc
s_mov_b32 s47, 0
""")
a.label("L_poll_y")
a(f"""
global_load_dwordx4 v[24:27], v6, s[40:41] offset:{R_Y} sc1
global_load_dwordx4 v[28:31], v6, s[40:41] offset:{R_Y+REC} sc1
global_load_dwordx4 v[32:35], v6, s[42:43] offset:{R_Y} sc1
global_load_dwordx4 v[36:39], v6, s[42:43] offset:{R_Y+REC} sc1
s_waitcnt vmcnt(0)
v_max3_u32 v48, v24, v25, v26
v_max3_u32 v49, v27, v28, v29
v_max3_u32 v50, v30, v31, v32
v_max3_u32 v51, v33, v34, v35
v_max3_u32 v52, v36, v37, v38
v_max3_u32 v48, v48, v49, v39
v_max3_u32 v50, v50, v51, v52
v_max_u32 v48, v48, v50
v_cmp_eq_u32 vcc, -1, v48
s_cbranch_vccz L_poll_y_ok
s_add_u32 s47, s47, 1
s_cmp_lt_u32 s47, {SPIN_MAX}
s_cbranch_scc1 L_poll_y
""")
a.label("L_poll_y_ok")
for i in range(4):
    a(f"v_add_f32 v{24+i}, v{24+i}, v{28+i}\nv_add_f32 v{32+i}, v{32+i}, v{36+i}")
for i in range(4):
    a(f"v_add_f32 v{24+i}, v{24+i}, v{32+i}")
a(f"""
s_mul_i32 s38, s3, 640
v_add_u32 v7, s38, v6
ds_write_b128 v7, v[24:27] offset:{RED4}
s_mov_b64 exec, s[32:33]
s_waitcnt lgkmcnt(0)
s_barrier
s_cmp_gt_u32 s3, 4
s_cbranch_scc1 L_fin_end
v_lshrrev_b32 v6, 1, v15
v_mul_u32_u24 v6, 320, v6
v_and_b32 v7, 1, v15
v_mul_u32_u24 v7, {4*640}, v7
v_add_u32 v6, v6, v7
v_lshl_add_u32 v6, v3, 2, v6
s_lshl_b32 s38, s3, 6
v_add_u32 v6, s38, v6
ds_read_b32 v48, v6 offset:{RED4}
ds_read_b32 v49, v6 offset:{RED4+640}
ds_read_b32 v50, v6 offset:{RED4+1280}
ds_read_b32 v51, v6 offset:{RED4+1920}
s_waitcnt lgkmcnt(0)
v_add_f32 v48, v48, v49
v_add_f32 v50, v50, v51
v_add_f32 v48, v48, v50
v_mov_b32 v49, v48
v_permlane16_swap_b32 v48, v49
v_add_f32 v48, v48, v49
""")
rbf("v48", "v48")
a(f"""
v_mov_b32 v49, v48
v_permlane32_swap_b32 v48, v49
v_lshlrev_b32 v9, 16, v9
v_add_f32 v48, v9, v48
""")
rbf("v48", "v48")
a(f"""
v_add_f32 v48, v48, v49
v_cvt_pk_bf16_f32 v48, v48, 0
v_cmp_gt_u32 vcc, 16, v0
s_and_saveexec_b64 s[32:33], vcc
global_store_short v8, v48, s[22:23]
s_mov_b64 exec, s[32:33]
""")
a.label("L_fin_end")
stamp(7)
if STAMPS:
    a(f"""
s_waitcnt lgkmcnt(0)
s_cmp_lg_u32 s3, {STAMPWAVE}
s_cbranch_scc1 L_end
v_cmp_eq_u32 vcc, 0, v0
s_and_saveexec_b64 s[32:33], vcc
s_mul_i32 s38, s2, {NST*8}
s_add_u32 s38, s38, {STAMP_OFF}
v_mov_b32 v1, s38
""")
    for i in range(NST):
        a(f"v_mov_b32 v2, s{60+2*i}\nv_mov_b32 v3, s{61+2*i}\nglobal_store_dwordx2 v1, v[2:3], s[26:27] offset:{8*i}")
a.label("L_end")
a("s_endpgm")

hdr = open("parallel_sum__sliding_block_cached__glu_gated_glu__decode.s.ref").read().split("; Override")[0]
out = hdr + f"""; Override launch geometry by editing the next line (default: block=256,
; grid=ceil(out_elems/256), lds=0). Harness parses it; keep it on one line.
; @launch grid=(256,1,1) block=(512,1,1) lds={LDS_BYTES}
.amdgcn_target "amdgcn-amd-amdhsa--gfx950"
.text
.globl {NAME}
.p2align 8
.type {NAME},@function
{NAME}:
""" + a.render() + f""".section .rodata,"a"
.p2align 6
.amdhsa_kernel {NAME}
  .amdhsa_next_free_vgpr {NVGPR}
  .amdhsa_next_free_sgpr 102
  .amdhsa_accum_offset {NVGPR}
  .amdhsa_group_segment_fixed_size 0
  .amdhsa_kernarg_size 96
  .amdhsa_user_sgpr_count 2
  .amdhsa_user_sgpr_kernarg_segment_ptr 1
  .amdhsa_system_sgpr_workgroup_id_x 1
.end_amdhsa_kernel
"""
open(sys.argv[1], "w").write(out)
```

```python
import sys, os
from asmlib import Asm
NAME = "parallel_sum__sliding_block_cached__glu_gated_glu__decode_kernel"
E = lambda k, d: int(os.environ.get(k, str(d)))
STAMPS = E("STAMPS", 0); STAMPWAVE = E("STAMPWAVE", 0)
D = E("DEPTH", 6); KINIT = E("KINIT", 4); B2_AT = E("B2_AT", 0); TILE_LATE = E("TILE_LATE", 0)
FASTF = os.environ.get("FASTF", "sc1"); TPOS = E("TPOS", 10); POLLNT = E("POLLNT", 7); DUAL = E("DUAL", 4); PSLEEP = E("PSLEEP", 0); IL = E("IL", 1); NPOLLY = E("NPOLLY", 1); B0 = E("B0", 0); NPOLL = E("NPOLL", 1); POLLGAP = E("POLLGAP", 2); NOEX = E("NOEX", 0); CNT_AT = E("CNT_AT", 0)
NST = 16
XN = 0
RED1 = 1280; R1S = 784
QF = RED1 + 8 * R1S
HF = QF + 256
OF = HF + 128
MAXA = OF + 256
LRED = MAXA + 64
RED2 = LRED + 64
RED3 = RED2 + 4096
RED4 = RED3 + 5120
LDS_BYTES = RED4 + 5120
assert QF % 16 == 0 and RED3 % 16 == 0 and RED4 % 16 == 0
REC = 4736
R_O = 0; R_ML = 512; R_GLU = 1024; R_Q = 1536; R_Y = 2048; R_O2 = 2688; FOFF = 2688
STAMP_OFF = 2 << 20
LOG2E = 0x3fb8aa3b
SCALE = 0x3db504f3
SPIN_MAX = 200000

a = Asm()
def stamp(i):
    if STAMPS: a(f"s_memrealtime s[{60+2*i}:{61+2*i}]")
def v(n): return f"v{n}"
def v4(n): return f"v[{n}:{n+3}]"
DPPM = "row_mask:0xf bank_mask:0xf"
def half_allreduce(op, x, t):
    a(f"v_mov_b32 {t}, {x}\nv_permlane32_swap_b32 {x}, {t}\n{op} {x}, {x}, {t}")
def rows_allreduce(op, x, t):
    half_allreduce(op, x, t)
    a(f"v_mov_b32 {t}, {x}\nv_permlane16_swap_b32 {x}, {t}\n{op} {x}, {x}, {t}")
def row_allreduce(op, x, rors=(8, 4, 2, 1)):
    for r in rors: a(f"{op}_dpp {x}, {x}, {x} row_ror:{r} {DPPM}")
def rbf(dst, src): a(f"v_cvt_pk_bf16_f32 {dst}, 0, {src}")
def reduce8_g(A):
    for i in range(4): a(f"v_permlane32_swap_b32 v{A+i}, v{A+i+4}")
    for i in range(4): a(f"v_add_f32 v{A+i}, v{A+i}, v{A+i+4}")
    for i in range(2): a(f"v_permlane16_swap_b32 v{A+i}, v{A+i+2}")
    for i in range(2): a(f"v_add_f32 v{A+i}, v{A+i}, v{A+i+2}")
def EX(mask): a(f"s_mov_b64 s[32:33], exec\ns_mov_b64 exec, {mask}")
def EXR(): a("s_mov_b64 exec, s[32:33]")

XA_l, XA_h = 12, 13
XG = 17
MX = 23
ACC = 24
S = 32; AC2 = 32
WB = 64; GL = 76; TL = 64
QR = 88
PQ = 48
PG = 240
KB = 112; VB = 176
NVGPR = 256
M_C10 = "s[34:35]"; M_R4 = "s[36:37]"; M_L32 = "s[54:55]"; M_GV = "s[50:51]"; M_B1 = "s[30:31]"; M_B0 = "s[52:53]"

a("s_load_dwordx16 s[4:19], s[0:1], 0\ns_load_dwordx8 s[20:27], s[0:1], 64")
stamp(0)
a(f"""
s_cmp_ge_u32 s2, 256
s_cbranch_scc1 L_end
s_and_b32 s28, s2, 31
s_lshr_b32 s29, s2, 5
v_lshlrev_b32 v1, 4, v0                       ; kv offset = tid*16
v_lshrrev_b32 v2, 6, v0
v_and_b32 v0, 63, v0
v_readfirstlane_b32 s3, v2
v_lshrrev_b32 v15, 4, v0                      ; g
v_and_b32 v3, 15, v0                          ; c
v_mul_u32_u24 v5, 10, v2
v_add_u32 v5, v5, v15
v_lshlrev_b32 v10, 13, v5
v_lshl_add_u32 v10, v3, 4, v10
v_mul_u32_u24 v9, 20, v0
v_lshrrev_b32 v6, 3, v0                       ; r
s_movk_i32 s39, 3456
v_mul_lo_u32 v11, v6, s39
v_and_b32 v7, 7, v0
v_lshl_add_u32 v11, v7, 4, v11
v_mov_b32 v97, 0
v_cmp_gt_u32 {M_C10}, 10, v3
v_cmp_gt_u32 {M_R4}, 4, v6
v_cmp_gt_u32 {M_L32}, 32, v0
v_and_b32 v7, 2, v0
v_cmp_ne_u32 {M_B1}, 0, v7
v_and_b32 v7, 1, v0
v_cmp_ne_u32 {M_B0}, 0, v7
s_lshl_b32 s38, s28, 23
s_lshl_b32 s39, s29, {13 if IL else 17}
s_add_u32 s38, s38, s39
s_add_u32 s38, s38, 7340032
s_min_u32 s46, s28, 26
s_lshl_b32 s40, s46, 7
s_lshl_b32 s41, s28, 8
s_mul_i32 s42, s29, {80*8192}
s_add_u32 s41, s41, s42
s_mul_i32 s42, s2, {REC}
s_mul_i32 s43, s28, {REC}
s_and_b32 s58, s3, 3
s_mul_i32 s58, s58, 20
s_mul_i32 s59, s29, 80
s_add_u32 s58, s58, s59
s_mul_i32 s59, s58, 3456
s_add_u32 s59, s59, s40
s_cmp_lt_u32 s28, 27
s_cselect_b64 {M_GV}, -1, 0
v_cndmask_b32 v11, 0, v11, {M_GV}
s_waitcnt lgkmcnt(0)
s_add_u32 s44, s26, s42
s_addc_u32 s45, s27, 0
s_cmp_lg_u32 s3, 0
s_cbranch_scc1 L_noclear
v_mov_b32 v56, -1
v_mov_b32 v57, -1
v_mov_b32 v58, -1
v_mov_b32 v59, -1
v_lshlrev_b32 v60, 4, v0
global_store_dwordx4 v60, v[56:59], s[44:45] sc1
global_store_dwordx4 v60, v[56:59], s[44:45] offset:1024 sc1
global_store_dwordx4 v60, v[56:59], s[44:45] offset:2048 sc1
global_store_dwordx4 v60, v[56:59], s[44:45] offset:3072 sc1
v_add_u32 v61, 4096, v60
v_cmp_gt_u32 vcc, {(REC-4096)//16}, v0
s_and_saveexec_b64 s[32:33], vcc
global_store_dwordx4 v61, v[56:59], s[44:45] sc1
s_mov_b64 exec, s[32:33]
""")
a.label("L_noclear")
a(f"""
global_load_dwordx4 v[48:51], v9, s[4:5]
global_load_dword v52, v9, s[4:5] offset:16
s_add_u32 s6, s6, s38
s_addc_u32 s7, s7, 0
s_add_u32 s8, s8, s38
s_addc_u32 s9, s9, 0
s_add_u32 s10, s10, s41
s_addc_u32 s11, s11, 0
s_cmp_ge_u32 s3, 4
s_cselect_b32 s56, s18, s16
s_cselect_b32 s57, s19, s17
s_add_u32 s56, s56, s59
s_addc_u32 s57, s57, 0
s_add_u32 s48, s26, s43
s_addc_u32 s49, s27, 0
""")
stream = [("w", j) for j in range(3)] + [("g", i) for i in range(3)]
stream += [("k", j) for j in range(16)] + [("v", j) for j in range(TPOS)] + [("t", j) for j in range(6)] + [("v", j) for j in range(TPOS, 16)]
issued = [0]
order = []
def issue_next():
    if issued[0] >= len(stream): return
    kind, j = stream[issued[0]]
    order.append((kind, j))
    issued[0] += 1
    if kind == "w":
        if j == 2: EX(M_L32)
        a(f"global_load_dwordx4 {v4(WB+4*j)}, v10, s[10:11] nt")
        if j == 2: EXR()
        else: a("s_add_u32 s10, s10, 32768\ns_addc_u32 s11, s11, 0")
    elif kind in "kv":
        lo = 6 if kind == "k" else 8
        B = KB if kind == "k" else VB
        a(f"global_load_dwordx4 {v4(B+4*j)}, v1, s[{lo}:{lo+1}] nt")
        if j < 15: a(f"s_add_u32 s{lo}, s{lo}, {65536 if IL else 8192}\ns_addc_u32 s{lo+1}, s{lo+1}, 0")
    elif kind == "g":
        if j == 2: EX(M_R4)
        a(f"global_load_dwordx4 {v4(GL+4*j)}, v11, s[56:57] nt")
        if j == 2: EXR()
        else: a(f"s_add_u32 s56, s56, {8*3456}\ns_addc_u32 s57, s57, 0")
    elif kind == "t":
        EX(M_C10)
        if j < 4:
            a(f"global_load_dwordx4 {v4(TL+4*j)}, v98, s[{12 if j < 2 else 14}:{13 if j < 2 else 15}] offset:{(j&1)*1280} nt")
        else:
            a(f"global_load_dwordx4 {v4(TL+4*j)}, v99, s[20:21] offset:{(j&1)*1280} nt")
        EXR()
def wait_for(item):
    i = order.index(item)
    a(f"s_waitcnt vmcnt({len(order) - 1 - i})")
def refill(done_item):
    i = order.index(done_item)
    while issued[0] < len(stream) and len(order) - 1 - i < D:
        if TILE_LATE and stream[issued[0]][0] == "t": break
        issue_next()

for _ in range(6): issue_next()
if B0: a("s_barrier")
for _ in range(KINIT): issue_next()
a(f"s_waitcnt vmcnt({6 + KINIT})")
stamp(1)
a(f"""
s_cmp_lg_u32 s3, 0
s_cbranch_scc1 L_nosig
v_mov_b32 v57, 1
s_lshl_b32 s38, s28, 2
v_mov_b32 v58, s38
v_cmp_eq_u32 vcc, 0, v0
s_and_saveexec_b64 s[32:33], vcc
global_atomic_add v58, v57, s[24:25] sc1
s_mov_b64 exec, s[32:33]
""")
a.label("L_nosig")
for k in range(5):
    a(f"v_lshlrev_b32 v{24+k}, 16, v{48+k}\nv_and_b32 v{32+k}, 0xffff0000, v{48+k}")
a("""
v_add_f32 v53, v24, v32
v_add_f32 v54, v25, v33
v_add_f32 v55, v26, v34
v_add_f32 v56, v27, v35
v_add_f32 v57, v28, v36
v_add_f32 v53, v53, v54
v_add_f32 v55, v55, v56
v_add_f32 v53, v53, v57
v_add_f32 v53, v53, v55
""")
row_allreduce("v_add_f32", "v53")
rows_allreduce("v_add_f32", "v53", "v54")
a("v_mul_f32 v53, 0x3acccccd, v53")
XS = [24, 25, 26, 27, 28, 32, 33, 34, 35, 36]
a("v_sub_f32 v55, v24, v53\nv_mul_f32 v54, v55, v55")
for r in XS[1:]:
    a(f"v_sub_f32 v55, v{r}, v53\nv_fmac_f32 v54, v55, v55")
row_allreduce("v_add_f32", "v54")
rows_allreduce("v_add_f32", "v54", "v55")
a("v_mul_f32 v54, 0x3acccccd, v54")
rbf("v53", "v53"); rbf("v54", "v54")
a("v_add_f32 v54, 0x3727c5ac, v54")
rbf("v54", "v54")
a("""
v_sqrt_f32 v55, v54
v_rcp_f32 v56, v55
v_fma_f32 v57, -v55, v55, v54
v_mul_f32 v56, 0.5, v56
v_fma_f32 v55, v57, v56, v55
""")
rbf("v55", "v55")
a("v_rcp_f32 v56, v55")
for r in XS: a(f"v_sub_f32 v{r}, v{r}, v53")
for r in XS: rbf(v(r), v(r))
for r in XS:
    a(f"v_mul_f32 v57, v{r}, v56\nv_fma_f32 v58, -v57, v55, v{r}\nv_fma_f32 v{r}, v58, v56, v57")
for k in range(5): a(f"v_cvt_pk_bf16_f32 v{48+k}, v{24+k}, v{32+k}")
for k in range(5): a(f"ds_write_b32 v9, v{48+k} offset:{XN+4*k}")
a(f"""
s_mul_i32 s38, s3, 20
s_mul_i32 s39, s29, 160
s_add_u32 s38, s38, s39
v_lshlrev_b32 v5, 3, v3
v_lshl_add_u32 v5, v15, 1, v5
v_add_u32 v5, s38, v5
ds_read_u16 v{XA_l}, v5 offset:{XN}
s_lshl_b32 s38, s58, 1
v_lshrrev_b32 v6, 3, v0
v_lshl_add_u32 v6, v6, 1, s38
ds_read_u16 v{XG}, v6 offset:{XN}
ds_read_u16 v{XG+2}, v6 offset:{XN+16}
ds_read_u16 v{XG+4}, v6 offset:{XN+32}
""")
for i in range(16): a(f"v_mov_b32 v{ACC+i}, 0")
a(f"""
s_waitcnt lgkmcnt(0)
v_lshlrev_b32 v{XA_h}, 16, v{XA_l}
v_lshlrev_b32 v{XG+1}, 16, v{XG}
v_lshlrev_b32 v{XG+3}, 16, v{XG+2}
v_lshlrev_b32 v{XG+5}, 16, v{XG+4}
""")
for j in range(3):
    wait_for(("w", j))
    if j == 2: EX(M_L32)
    for i in range(4):
        a(f"v_dot2c_f32_bf16_dpp v{ACC+2*i}, v{XA_l}, v{WB+4*j+i} row_newbcast:{j} {DPPM}")
        a(f"v_dot2c_f32_bf16_dpp v{ACC+2*i+1}, v{XA_h}, v{WB+4*j+i} row_newbcast:{j} {DPPM}")
    if j == 2: EXR()
    refill(("w", j))
reduce8_g(ACC)
a(f"""
v_lshlrev_b32 v4, 5, v3
v_lshl_add_u32 v4, v15, 3, v4
s_mul_i32 s38, s3, {R1S}
v_add_u32 v5, s38, v4
ds_write_b64 v5, v[{ACC}:{ACC+1}] offset:{RED1}
""")
for j in range(3):
    wait_for(("g", j))
    if j == 2: EX(M_R4)
    for i in range(4):
        a(f"v_dot2c_f32_bf16 v{AC2+2*i}, v{XG+2*j}, v{GL+4*j+i}")
        a(f"v_dot2c_f32_bf16 v{AC2+2*i+1}, v{XG+2*j+1}, v{GL+4*j+i}")
    if j == 2: EXR()
    refill(("g", j))
reduce8_g(AC2)
a(f"""
v_add_f32_dpp v{AC2}, v{AC2}, v{AC2} row_ror:8 row_mask:0xf bank_mask:0x3
v_add_f32_dpp v{AC2}, v{AC2+1}, v{AC2+1} row_ror:8 row_mask:0xf bank_mask:0xc
v_and_b32 v5, 7, v0
v_lshlrev_b32 v5, 5, v5
v_lshrrev_b32 v6, 5, v0
v_lshl_add_u32 v5, v6, 4, v5
v_bfe_u32 v6, v0, 4, 1
v_lshl_add_u32 v5, v6, 3, v5
v_bfe_u32 v6, v0, 3, 1
v_lshl_add_u32 v5, v6, 2, v5
s_mul_i32 s38, s3, {R1S}
v_add_u32 v5, s38, v5
ds_write_b32 v5, v{AC2} offset:{RED1+512}
s_waitcnt lgkmcnt(0)
s_barrier
v_and_b32 v6, 31, v0
v_lshrrev_b32 v7, 5, v0
s_cmp_ge_u32 s3, 4
s_cbranch_scc1 L_glupub
v_mul_u32_u24 v7, {4*R1S}, v7
v_lshl_add_u32 v7, v6, 2, v7
s_lshl_b32 s38, s3, 7
v_add_u32 v7, s38, v7
ds_read_b32 v48, v7 offset:{RED1}
ds_read_b32 v49, v7 offset:{RED1+R1S}
ds_read_b32 v50, v7 offset:{RED1+2*R1S}
ds_read_b32 v51, v7 offset:{RED1+3*R1S}
s_add_u32 s38, s38, {R_Q}
v_lshl_add_u32 v6, v6, 2, s38
s_waitcnt lgkmcnt(0)
v_add_f32 v48, v48, v49
v_add_f32 v50, v50, v51
v_add_f32 v48, v48, v50
s_branch L_pub0
""")
a.label("L_glupub")
a(f"""
v_mul_u32_u24 v7, {2*R1S}, v7
v_lshl_add_u32 v7, v6, 2, v7
s_and_b32 s38, s3, 1
s_lshl_b32 s38, s38, 7
s_bfe_u32 s39, s3, 0x10001
s_mul_i32 s40, s39, {4*R1S}
s_add_u32 s40, s40, s38
v_add_u32 v7, s40, v7
ds_read_b32 v48, v7 offset:{RED1+512}
ds_read_b32 v49, v7 offset:{RED1+512+R1S}
s_lshl_b32 s39, s39, 8
s_add_u32 s39, s39, s38
s_add_u32 s39, s39, {R_GLU}
v_lshl_add_u32 v6, v6, 2, s39
s_waitcnt lgkmcnt(0)
v_add_f32 v48, v48, v49
""")
a.label("L_pub0")
half_allreduce("v_add_f32", "v48", "v49")
a(f"v_min_u32 v48, 0xfffffffe, v48")
EX(M_L32)
a("global_store_dword v6, v48, s[44:45] sc1")
if 2 <= DUAL < 4: a("global_store_dword v6, v48, s[44:45]")
if DUAL >= 4: a(f"global_store_dword v6, v48, s[44:45] offset:{FOFF}")
EXR()
order.append(("pub", 0))
stamp(2)
a(f"""
s_lshl_b32 s38, s3, 4
v_lshl_add_u32 v98, v15, 1, s38
s_movk_i32 s39, 1280
v_mul_lo_u32 v98, v98, s39
v_lshl_add_u32 v98, v3, 4, v98
s_lshl_b32 s38, s3, 3
v_lshl_add_u32 v2, v15, 1, s38                ; 8w + 2g
v_mul_lo_u32 v99, v2, s39
v_lshl_add_u32 v99, v3, 4, v99
v_cndmask_b32 v99, 0, v99, {M_GV}
s_mul_i32 s38, s28, {128*1280}
s_mul_i32 s40, s29, 160
s_add_u32 s38, s38, s40
s_add_u32 s12, s12, s38
s_addc_u32 s13, s13, 0
s_mul_i32 s38, s46, {64*1280}
s_add_u32 s38, s38, s40
s_add_u32 s20, s20, s38
s_addc_u32 s21, s21, 0
s_add_u32 s14, s12, {8*1280}
s_addc_u32 s15, s13, 0
v_lshrrev_b32 v92, 5, v0
v_mul_u32_u24 v92, {32*REC}, v92
v_and_b32 v8, 31, v0
v_lshl_add_u32 v92, v8, 4, v92
v_add_u32 v93, {64*REC}, v92
v_add_u32 v94, {128*REC}, v92
v_add_u32 v95, {192*REC}, v92
v_lshlrev_b32 v8, 2, v8
s_cmp_eq_u32 s3, 0
s_cselect_b32 s58, {2 if NOEX else 0}, 2
s_add_u32 s42, s48, {FOFF}
s_addc_u32 s43, s49, 0
""")
def cnt_issue(): a("global_load_dword v96, v8, s[24:25] sc1")
def data_issue(fast=False):
    b = "s[42:43]" if fast else "s[48:49]"
    for k in range(4): a(f"global_load_dwordx4 {v4(PQ+4*k)}, v{92+k}, {b} offset:{R_Q} sc1")
    for k in range(4): a(f"global_load_dwordx4 {v4(PG+4*k)}, v{92+k}, {b} offset:{R_GLU} sc1")
def checkpoint(n, first=False, fast=False):
    a(f"s_cmp_eq_u32 s58, 2\ns_cbranch_scc1 L_ck{n}_skip")
    if first:
        cnt_issue()
    else:
        a(f"""
s_cmp_eq_u32 s58, 1
s_cbranch_scc1 L_ck{n}_data
v_readlane_b32 s38, v96, s28
s_cmp_ge_u32 s38, 8
s_cbranch_scc1 L_ck{n}_cntok
""")
        cnt_issue()
        a(f"s_branch L_ck{n}_skip")
        a.label(f"L_ck{n}_data")
        regs = list(range(PQ, PQ+16)) + list(range(PG, PG+16))
        a(f"v_max3_u32 v100, v{regs[0]}, v{regs[1]}, v{regs[2]}")
        a(f"v_max3_u32 v101, v{regs[3]}, v{regs[4]}, v{regs[5]}")
        rest = regs[6:]
        for i in range(0, len(rest), 2):
            a(f"v_max3_u32 v{100+(i//2)%2}, v{100+(i//2)%2}, v{rest[i]}, v{rest[i+1]}")
        a(f"""
v_max_u32 v100, v100, v101
v_cmp_eq_u32 vcc, -1, v100
s_cbranch_vccnz L_ck{n}_cntok
s_mov_b32 s58, 2
s_branch L_ck{n}_skip
""")
        a.label(f"L_ck{n}_cntok")
        a("s_mov_b32 s58, 1")
        data_issue(fast and DUAL >= 4)
    a.label(f"L_ck{n}_skip")
kv_items = [("k", j) for j in range(16)] + [("v", j) for j in range(B2_AT + 1)]
nck = 0
started = False
mark = None
for it in kv_items:
    if order.index(it) < 6 + KINIT - 100: continue
    wait_for(it)
    if it[0] == "k" and it[1] % 4 == 3 and it[1] > 8: stamp(8 + it[1] // 4)
    if not started and it[1] >= CNT_AT:
        checkpoint(nck, first=True); nck += 1; started = True; mark = len(order)
    elif started and order.index(it) >= mark:
        checkpoint(nck, fast=True); nck += 1
        mark = len(order)
    refill(it)
a(f"s_cmp_lg_u32 s3, 0\ns_cbranch_scc1 L_b2")
a(f"s_cmp_eq_u32 s58, 2\ns_cbranch_scc1 L_pqok\ns_waitcnt vmcnt({len(order) - mark})")
checkpoint(nck); nck += 1
a("s_mov_b32 s47, 0")
a.label("L_pqloop")
a(f"""
s_cmp_eq_u32 s58, 2
s_cbranch_scc1 L_pqok
s_add_u32 s47, s47, 1
s_cmp_ge_u32 s47, {SPIN_MAX}
s_cbranch_scc1 L_pqok
s_waitcnt vmcnt(0)
""")
checkpoint(nck, fast=True)
a("s_waitcnt vmcnt(0)")
checkpoint(nck + 1)
a("s_branch L_pqloop")
a.label("L_pqok")
for i in range(4):
    a(f"v_add_f32 v{PQ+i}, v{PQ+i}, v{PQ+4+i}\nv_add_f32 v{PQ+8+i}, v{PQ+8+i}, v{PQ+12+i}")
    a(f"v_add_f32 v{PG+i}, v{PG+i}, v{PG+4+i}\nv_add_f32 v{PG+8+i}, v{PG+8+i}, v{PG+12+i}")
for i in range(4):
    a(f"v_add_f32 v{PQ+i}, v{PQ+i}, v{PQ+8+i}\nv_add_f32 v{PG+i}, v{PG+i}, v{PG+8+i}")
for i in range(4):
    half_allreduce("v_add_f32", v(PQ+i), v(PQ+4+i))
    half_allreduce("v_add_f32", v(PG+i), v(PG+4+i))
a(f"""
v_cvt_pk_bf16_f32 v{PQ+4}, v{PQ}, v{PQ+1}
v_cvt_pk_bf16_f32 v{PQ+5}, v{PQ+2}, v{PQ+3}
v_lshlrev_b32 v5, 1, v8                       ; (l&31)*8
ds_write_b64 v5, v[{PQ+4}:{PQ+5}] offset:{QF}
""")
for i in range(4):
    rbf(v(PG+i), v(PG+i))
for i in range(4):
    a(f"v_mov_b32 v{PG+4+i}, v{PG+i}\nv_permlane16_swap_b32 v{PG+i}, v{PG+4+i}")
for i in range(4):
    g_, u_, t0, t1 = PG+i, PG+4+i, PG+8+i, PG+12+i
    a(f"""
v_mul_f32 v{g_}, {LOG2E ^ 0x80000000:#x}, v{g_}
v_min_f32 v{g_}, 0x42fc0000, v{g_}
v_exp_f32 v{g_}, v{g_}
v_add_f32 v{g_}, 1.0, v{g_}
v_rcp_f32 v{t0}, v{g_}
v_fma_f32 v{t1}, -v{t0}, v{g_}, 1.0
v_fma_f32 v{t0}, v{t1}, v{t0}, v{t0}
""")
    rbf(v(t0), v(t0))
    a(f"v_mul_f32 v{t0}, v{t0}, v{u_}\nv_cndmask_b32 v{t0}, 0, v{t0}, {M_GV}")
a(f"""
v_cvt_pk_bf16_f32 v{PG}, v{PG+8}, v{PG+9}
v_cvt_pk_bf16_f32 v{PG+1}, v{PG+10}, v{PG+11}
v_lshlrev_b32 v5, 3, v3
ds_write_b64 v5, v[{PG}:{PG+1}] offset:{HF}
s_waitcnt lgkmcnt(0)
""")
a.label("L_b2")
a(f"""
s_barrier
v_lshlrev_b32 v6, 4, v3
ds_read_b128 {v4(QR)}, v6 offset:{QF}
""")
for j in range(16): a(f"v_mov_b32 v{S+j}, 0")
a("s_waitcnt lgkmcnt(0)")
for i in range(4):
    for j in range(16):
        a(f"v_dot2c_f32_bf16 v{S+j}, v{KB+4*j+i}, v{QR+i}")
for i in range(8):
    a(f"v_add_f32_dpp v{S+i}, v{S+i}, v{S+i} row_ror:8 row_mask:0xf bank_mask:0x3")
    a(f"v_add_f32_dpp v{S+i}, v{S+i+8}, v{S+i+8} row_ror:8 row_mask:0xf bank_mask:0xc")
for i in range(4):
    a(f"v_add_f32_dpp v{S+i}, v{S+i}, v{S+i} row_half_mirror row_mask:0xf bank_mask:0x5")
    a(f"v_add_f32_dpp v{S+i}, v{S+i+4}, v{S+i+4} row_half_mirror row_mask:0xf bank_mask:0xa")
a(f"""
v_cndmask_b32 v{S+4}, v{S}, v{S+2}, {M_B1}
v_cndmask_b32 v{S+5}, v{S+2}, v{S}, {M_B1}
v_cndmask_b32 v{S+6}, v{S+1}, v{S+3}, {M_B1}
v_cndmask_b32 v{S+7}, v{S+3}, v{S+1}, {M_B1}
v_add_f32_dpp v{S}, v{S+5}, v{S+4} quad_perm:[2,3,0,1] {DPPM}
v_add_f32_dpp v{S+1}, v{S+7}, v{S+6} quad_perm:[2,3,0,1] {DPPM}
v_cndmask_b32 v{S+2}, v{S}, v{S+1}, {M_B0}
v_cndmask_b32 v{S+3}, v{S+1}, v{S}, {M_B0}
v_add_f32_dpp v{S}, v{S+3}, v{S+2} quad_perm:[1,0,3,2] {DPPM}
""")
rbf(v(S), v(S))
a(f"v_mul_f32 v{S}, {SCALE:#x}, v{S}")
rbf(v(S), v(S))
a(f"v_mov_b32 v{S+1}, v{S}")
row_allreduce("v_max_f32", v(S+1))
rows_allreduce("v_max_f32", v(S+1), v(S+2))
a(f"""
s_lshl_b32 s38, s3, 2
v_mov_b32 v6, s38
ds_write_b32 v6, v{S+1} offset:{MAXA}
s_waitcnt lgkmcnt(0)
s_barrier
v_and_b32 v7, 7, v0
v_lshlrev_b32 v7, 2, v7
ds_read_b32 v{S+1}, v7 offset:{MAXA}
s_waitcnt lgkmcnt(0)
""")
row_allreduce("v_max_f32", v(S+1), (4, 2, 1))
PL, PH = S + 2, S + 3
a(f"""
v_mov_b32 v{MX}, v{S+1}
v_sub_f32 v{S}, v{S}, v{S+1}
v_mul_f32 v{S}, {LOG2E:#x}, v{S}
v_exp_f32 v{S}, v{S}
v_cvt_pk_bf16_f32 v{PL}, v{S}, 0
v_cvt_pk_bf16_f32 v{PH}, 0, v{S}
""")
row_allreduce("v_add_f32", v(S))
rows_allreduce("v_add_f32", v(S), v(S+4))
a(f"ds_write_b32 v6, v{S} offset:{LRED}")
stamp(3)
for i in range(8): a(f"v_mov_b32 v{ACC+i}, 0")
B2_ITEM = ("v", B2_AT) if B2_AT >= 0 else ("k", 15)
pos_b2 = stream.index(B2_ITEM)
last_v = stream.index(("v", 15))
for pi, it in enumerate(stream):
    if it[0] not in "vt" or pi > last_v: continue
    if pi > pos_b2:
        wait_for(it)
        refill(it)
    elif pi == stream.index(("v", 0)):
        refill(B2_ITEM)
    if pi == last_v:
        while issued[0] < len(stream): issue_next()
    if it[0] == "v":
        j = it[1]
        if j % 4 == 3: stamp(12 + j // 4)
        for i in range(4):
            a(f"v_dot2c_f32_bf16_dpp v{ACC+2*i}, v{PL}, v{VB+4*j+i} row_newbcast:{j} {DPPM}")
            a(f"v_dot2c_f32_bf16_dpp v{ACC+2*i+1}, v{PH}, v{VB+4*j+i} row_newbcast:{j} {DPPM}")
reduce8_g(ACC)
a(f"""
s_lshl_b32 s38, s3, 9
v_add_u32 v5, s38, v4
ds_write_b64 v5, v[{ACC}:{ACC+1}] offset:{RED2}
s_waitcnt lgkmcnt(0)
s_barrier
""")
stamp(4)
def sum_part(RED, stride):
    a(f"""
v_and_b32 v6, 31, v0
v_lshrrev_b32 v7, 5, v0
v_mul_u32_u24 v7, {4*stride}, v7
v_lshl_add_u32 v7, v6, 2, v7
s_lshl_b32 s38, s3, 7
v_add_u32 v7, s38, v7
ds_read_b32 v48, v7 offset:{RED}
ds_read_b32 v49, v7 offset:{RED+stride}
ds_read_b32 v50, v7 offset:{RED+2*stride}
ds_read_b32 v51, v7 offset:{RED+3*stride}
""")
def sum_fin(off):
    a(f"""
v_lshl_add_u32 v6, v6, 2, s38
s_waitcnt lgkmcnt(0)
v_add_f32 v48, v48, v49
v_add_f32 v50, v50, v51
v_add_f32 v48, v48, v50
""")
    half_allreduce("v_add_f32", "v48", "v49")
    a("v_min_u32 v48, 0xfffffffe, v48")
    EX(M_L32)
    a(f"global_store_dword v6, v48, s[44:45] offset:{off} sc1")
    EXR()
a(f"""
v_and_b32 v5, 7, v0
v_lshrrev_b32 v6, 3, v0
v_lshlrev_b32 v6, 9, v6
v_lshl_add_u32 v6, v5, 3, v6
s_lshl_b32 s38, s3, 6
v_add_u32 v6, s38, v6
ds_read_b64 v[48:49], v6 offset:{RED2}
v_lshlrev_b32 v7, 2, v5
ds_read_b32 v51, v7 offset:{LRED}
v_lshlrev_b32 v7, 1, v2
ds_read_b32 v58, v7 offset:{HF}
s_lshl_b32 s38, s3, 7
v_lshl_add_u32 v5, v5, 4, s38                 ; 128 w + 16 i
v_lshrrev_b32 v6, 1, v3
v_mul_u32_u24 v6, {32*REC}, v6
v_and_b32 v7, 1, v3
v_lshl_add_u32 v7, v7, 2, v15
v_lshl_add_u32 v9, v7, 4, v6
v_add_u32 v9, s38, v9
v_cmp_gt_u32 vcc, 8, v0
s_waitcnt lgkmcnt(0)
v_add_f32_dpp v48, v48, v48 row_ror:8 {DPPM}
v_add_f32_dpp v49, v49, v49 row_ror:8 {DPPM}
v_add_f32_dpp v51, v51, v51 row_ror:4 {DPPM}
v_mov_b32 v52, v48
v_mov_b32 v53, v49
v_add_f32_dpp v51, v51, v51 row_ror:2 {DPPM}
v_permlane32_swap_b32 v48, v52
v_permlane32_swap_b32 v49, v53
v_add_f32 v48, v48, v52
v_add_f32 v49, v49, v53
v_add_f32_dpp v51, v51, v51 row_ror:1 {DPPM}
v_mov_b32 v52, v48
v_mov_b32 v53, v49
v_min_u32 v50, 0xfffffffe, v{MX}
v_permlane16_swap_b32 v48, v52
v_permlane16_swap_b32 v49, v53
v_add_f32 v48, v48, v52
v_add_f32 v49, v49, v53
v_min_u32 v51, 0xfffffffe, v51
v_min_u32 v48, 0xfffffffe, v48
v_min_u32 v49, 0xfffffffe, v49
s_and_saveexec_b64 s[32:33], vcc
{"global_store_dwordx4 v5, v[48:51], s[44:45] offset:%d" % R_O2 if DUAL >= 3 else ""}
global_store_dwordx4 v5, v[48:51], s[44:45] offset:{R_O} sc1
{"global_store_dwordx4 v5, v[48:51], s[44:45] offset:%d" % R_O if 0 < DUAL < 3 else ""}
s_mov_b64 exec, s[32:33]
""")
def pissue(k):
    a(f"global_load_dwordx4 v[{100+4*k}:{103+4*k}], v9, s[48:49] offset:{R_O2 if DUAL >= 3 else R_O} {FASTF if DUAL >= 3 else 'sc1'}")
assert NPOLL <= 3
pissue(0)
stamp(8)
a(f"""
s_cmp_lg_u32 s28, s29
s_cbranch_scc1 L_nofc
s_cmp_lg_u32 s3, 7
s_cbranch_scc1 L_nofc
s_mov_b32 s47, 0
""")
a.label("L_poll_c")
a(f"""
global_load_dword v48, v8, s[24:25] sc1
s_waitcnt vmcnt(0)
v_cmp_gt_u32 vcc, 8, v48
s_cbranch_vccz L_nofc
s_add_u32 s47, s47, 1
s_cmp_lt_u32 s47, {SPIN_MAX}
s_cbranch_scc1 L_poll_c
""")
a.label("L_nofc")
for i in range(16): a(f"v_mov_b32 v{ACC+i}, 0")
a(f"""
v_and_b32 v49, 0xffff, v58
v_lshlrev_b32 v50, 16, v58
v_lshrrev_b32 v51, 16, v58
v_and_b32 v52, 0xffff0000, v58
s_waitcnt vmcnt({3 if DUAL else 2})
""")
for i in range(2):
    for k in range(4):
        a(f"v_cndmask_b32 v{TL+16+4*i+k}, 0, v{TL+16+4*i+k}, {M_GV}")
for i in range(2):
    for k in range(4):
        a(f"v_dot2c_f32_bf16 v{AC2+2*k}, v{49+2*i}, v{TL+16+4*i+k}")
        a(f"v_dot2c_f32_bf16 v{AC2+2*k+1}, v{50+2*i}, v{TL+16+4*i+k}")
a("s_mov_b32 s47, 0")
for k in range(1, NPOLL - 1):
    pissue(k)
    a(f"s_sleep {POLLGAP}")
a.label("L_poll_o")
if POLLNT:
    assert NPOLL == 1
    for t in range(POLLNT + 1):
        a(f"""
s_waitcnt vmcnt(0)
v_max3_u32 v52, v100, v101, v102
v_max_u32 v52, v52, v103
v_cmp_eq_u32 vcc, -1, v52
s_cbranch_vccz L_poll_o_ok0
global_load_dwordx4 v[100:103], v9, s[48:49] offset:{(R_O2 if DUAL >= 3 else R_O) if t < POLLNT else R_O} {FASTF if t < POLLNT else "sc1"}
""")
else:
  for k in range(NPOLL):
    if NPOLL > 1: pissue((k + NPOLL - 1) % NPOLL)
    b = 100 + 4*k
    a(f"""
s_waitcnt vmcnt({NPOLL-1})
v_max3_u32 v52, v{b}, v{b+1}, v{b+2}
v_max_u32 v52, v52, v{b+3}
v_cmp_eq_u32 vcc, -1, v52
s_cbranch_vccz L_poll_o_ok{k}
""")
    if NPOLL == 1:
        if PSLEEP: a(f"s_sleep {PSLEEP}")
        pissue(0)
a(f"""
s_add_u32 s47, s47, 1
s_cmp_lt_u32 s47, {SPIN_MAX}
s_cbranch_scc1 L_poll_o
""")
for k in range(NPOLL):
    a.label(f"L_poll_o_ok{k}")
    for i in range(4): a(f"v_mov_b32 v{48+i}, v{100+4*k+i}")
    if k < NPOLL - 1: a("s_branch L_poll_o_ok")
a.label("L_poll_o_ok")
stamp(5)
if STAMPS: a("s_mov_b32 s78, s47\ns_mov_b32 s79, 0")
a("v_mov_b32 v52, v50")
row_allreduce("v_max_f32", "v52", (8, 4, 2))
a(f"""
v_sub_f32 v50, v50, v52
v_mul_f32 v50, {LOG2E:#x}, v50
v_exp_f32 v50, v50
v_mul_f32 v51, v51, v50
v_mul_f32 v48, v48, v50
v_mul_f32 v49, v49, v50
""")
for r in (8, 4, 2):
    for x in (51, 48, 49):
        a(f"v_add_f32_dpp v{x}, v{x}, v{x} row_ror:{r} {DPPM}")
a(f"""
v_rcp_f32 v52, v51
v_mul_f32 v53, v48, v52
v_mul_f32 v54, v49, v52
v_fma_f32 v55, -v53, v51, v48
v_fma_f32 v56, -v54, v51, v49
v_fma_f32 v53, v55, v52, v53
v_fma_f32 v54, v56, v52, v54
v_cvt_pk_bf16_f32 v55, v53, 0
v_cvt_pk_bf16_f32 v56, 0, v53
v_cvt_pk_bf16_f32 v57, v54, 0
v_cvt_pk_bf16_f32 v58, 0, v54
""")
for j in range(4):
    lo = 55 + 2*(j & 1)
    for i in range(4):
        a(f"v_dot2c_f32_bf16_dpp v{ACC+2*i}, v{lo}, v{TL+4*j+i} row_newbcast:{j>>1} {DPPM}")
        a(f"v_dot2c_f32_bf16_dpp v{ACC+2*i+1}, v{lo+1}, v{TL+4*j+i} row_newbcast:{j>>1} {DPPM}")
for i in range(8): a(f"v_permlane32_swap_b32 v{ACC+i}, v{AC2+i}")
for i in range(8): a(f"v_add_f32 v{ACC+i}, v{ACC+i}, v{AC2+i}")
for i in range(4): a(f"v_permlane16_swap_b32 v{ACC+i}, v{ACC+i+4}")
for i in range(4): a(f"v_add_f32 v{ACC+i}, v{ACC+i}, v{ACC+i+4}")
a(f"""
v_lshrrev_b32 v6, 1, v15
v_mul_u32_u24 v6, 320, v6
v_lshl_add_u32 v6, v3, 5, v6
v_and_b32 v7, 1, v15
v_lshl_add_u32 v6, v7, 4, v6
s_mul_i32 s38, s3, 640
v_add_u32 v6, s38, v6
""")
EX(M_C10)
a(f"ds_write_b128 v6, v[{ACC}:{ACC+3}] offset:{RED3}")
EXR()
a(f"""
s_waitcnt lgkmcnt(0)
s_barrier
s_cmp_gt_u32 s3, 4
s_cbranch_scc1 L_pub2done
""")
sum_part(RED3, 640)
sum_fin(R_Y)
a.label("L_pub2done")
stamp(6)
a(f"""
s_cmp_lg_u32 s28, s29
s_cbranch_scc1 L_fin_end
s_mul_i32 s38, s29, {32*REC}
s_mul_i32 s39, s3, {4*REC}
s_add_u32 s38, s38, s39
s_add_u32 s38, s38, {R_Y}
s_add_u32 s40, s26, s38
s_addc_u32 s41, s27, 0
s_add_u32 s42, s40, {2*REC}
s_addc_u32 s43, s41, 0
v_lshlrev_b32 v6, 4, v0
v_add_u32 v10, {REC}, v6
s_mul_i32 s38, s29, 160
s_lshl_b32 s39, s3, 5
s_add_u32 s38, s38, s39
v_lshl_add_u32 v8, v3, 1, s38
v_min_u32 v8, 1278, v8
global_load_ushort v9, v8, s[4:5]
v_cmp_gt_u32 vcc, 40, v0
s_and_saveexec_b64 s[32:33], vcc
s_mov_b32 s47, 0
""")
a.label("L_poll_y")
a(f"""
global_load_dwordx4 v[24:27], v6, s[40:41] sc1
global_load_dwordx4 v[28:31], v10, s[40:41] sc1
global_load_dwordx4 v[32:35], v6, s[42:43] sc1
global_load_dwordx4 v[36:39], v10, s[42:43] sc1
s_waitcnt vmcnt(0)
v_max3_u32 v48, v24, v25, v26
v_max3_u32 v49, v27, v28, v29
v_max3_u32 v50, v30, v31, v32
v_max3_u32 v51, v33, v34, v35
v_max3_u32 v52, v36, v37, v38
v_max3_u32 v48, v48, v49, v39
v_max3_u32 v50, v50, v51, v52
v_max_u32 v48, v48, v50
v_cmp_eq_u32 vcc, -1, v48
s_cbranch_vccz L_poll_y_ok
s_add_u32 s47, s47, 1
s_cmp_lt_u32 s47, {SPIN_MAX}
s_cbranch_scc1 L_poll_y
""")
a.label("L_poll_y_ok")
for i in range(4):
    a(f"v_add_f32 v{24+i}, v{24+i}, v{28+i}\nv_add_f32 v{32+i}, v{32+i}, v{36+i}")
for i in range(4):
    a(f"v_add_f32 v{24+i}, v{24+i}, v{32+i}")
a(f"""
s_mul_i32 s38, s3, 640
v_add_u32 v7, s38, v6
ds_write_b128 v7, v[24:27] offset:{RED4}
s_mov_b64 exec, s[32:33]
s_waitcnt lgkmcnt(0)
s_barrier
s_cmp_gt_u32 s3, 4
s_cbranch_scc1 L_fin_end
v_lshrrev_b32 v6, 1, v15
v_mul_u32_u24 v6, 320, v6
v_and_b32 v7, 1, v15
v_mul_u32_u24 v7, {4*640}, v7
v_add_u32 v6, v6, v7
v_lshl_add_u32 v6, v3, 2, v6
s_lshl_b32 s38, s3, 6
v_add_u32 v6, s38, v6
ds_read_b32 v48, v6 offset:{RED4}
ds_read_b32 v49, v6 offset:{RED4+640}
ds_read_b32 v50, v6 offset:{RED4+1280}
ds_read_b32 v51, v6 offset:{RED4+1920}
s_waitcnt lgkmcnt(0)
v_add_f32 v48, v48, v49
v_add_f32 v50, v50, v51
v_add_f32 v48, v48, v50
v_mov_b32 v49, v48
v_permlane16_swap_b32 v48, v49
v_add_f32 v48, v48, v49
""")
rbf("v48", "v48")
a(f"""
v_mov_b32 v49, v48
v_permlane32_swap_b32 v48, v49
v_lshlrev_b32 v9, 16, v9
v_add_f32 v48, v9, v48
""")
rbf("v48", "v48")
a(f"""
v_add_f32 v48, v48, v49
v_cvt_pk_bf16_f32 v48, v48, 0
v_cmp_gt_u32 vcc, 16, v0
s_and_saveexec_b64 s[32:33], vcc
global_store_short v8, v48, s[22:23]
s_mov_b64 exec, s[32:33]
""")
a.label("L_fin_end")
stamp(7)
if STAMPS:
    a(f"""
s_waitcnt lgkmcnt(0)
s_cmp_lg_u32 s3, {STAMPWAVE}
s_cbranch_scc1 L_end
v_cmp_eq_u32 vcc, 0, v0
s_and_saveexec_b64 s[32:33], vcc
s_mul_i32 s38, s2, {NST*8}
s_add_u32 s38, s38, {STAMP_OFF}
v_mov_b32 v1, s38
""")
    for i in range(NST):
        a(f"v_mov_b32 v2, s{60+2*i}\nv_mov_b32 v3, s{61+2*i}\nglobal_store_dwordx2 v1, v[2:3], s[26:27] offset:{8*i}")
a.label("L_end")
a("s_endpgm")

hdr = open("parallel_sum__sliding_block_cached__glu_gated_glu__decode.s.ref").read().split("; Override")[0]
out = hdr + f"""; Override launch geometry by editing the next line (default: block=256,
; grid=ceil(out_elems/256), lds=0). Harness parses it; keep it on one line.
; @launch grid=(256,1,1) block=(512,1,1) lds={LDS_BYTES}
.amdgcn_target "amdgcn-amd-amdhsa--gfx950"
.text
.globl {NAME}
.p2align 8
.type {NAME},@function
{NAME}:
""" + a.render() + f""".section .rodata,"a"
.p2align 6
.amdhsa_kernel {NAME}
  .amdhsa_next_free_vgpr {NVGPR}
  .amdhsa_next_free_sgpr 102
  .amdhsa_accum_offset {NVGPR}
  .amdhsa_group_segment_fixed_size 0
  .amdhsa_kernarg_size 96
  .amdhsa_user_sgpr_count 2
  .amdhsa_user_sgpr_kernarg_segment_ptr 1
  .amdhsa_system_sgpr_workgroup_id_x 1
.end_amdhsa_kernel
"""
open(sys.argv[1], "w").write(out)
```

```python
import sys, os
from asmlib import Asm
NAME = "parallel_sum__sliding_block_cached__glu_gated_glu__decode_kernel"
E = lambda k, d: int(os.environ.get(k, str(d)))
STAMPS = E("STAMPS", 0); STAMPWAVE = E("STAMPWAVE", 0)
D = E("DEPTH", 6); KINIT = E("KINIT", 4); B2_AT = E("B2_AT", 0); TILE_LATE = E("TILE_LATE", 0)
FASTF = os.environ.get("FASTF", "sc1"); DIAG = E("DIAG", 0); TPOS = E("TPOS", 13); POLLNT = E("POLLNT", 7); DUAL = E("DUAL", 4); PSLEEP = E("PSLEEP", 0); IL = E("IL", 1); NPOLLY = E("NPOLLY", 1); B0 = E("B0", 0); NPOLL = E("NPOLL", 1); POLLGAP = E("POLLGAP", 2); NOEX = E("NOEX", 0); CNT_AT = E("CNT_AT", 0)
NST = 16
XN = 0
RED1 = 1280; R1S = 784
QF = RED1 + 8 * R1S
HF = QF + 256
OF = HF + 128
MAXA = OF + 256
LRED = MAXA + 64
RED2 = LRED + 64
RED3 = RED2 + 4096
RED4 = RED3 + 5120
LDS_BYTES = RED4 + 5120
assert QF % 16 == 0 and RED3 % 16 == 0 and RED4 % 16 == 0
REC = 4736
R_O = 0; R_ML = 512; R_GLU = 1024; R_Q = 1536; R_Y = 2048; R_O2 = 2688; FOFF = 2688
STAMP_OFF = 2 << 20
LOG2E = 0x3fb8aa3b
SCALE = 0x3db504f3
SPIN_MAX = 200000

a = Asm()
def stamp(i):
    if STAMPS: a(f"s_memrealtime s[{60+2*i}:{61+2*i}]")
def v(n): return f"v{n}"
def v4(n): return f"v[{n}:{n+3}]"
DPPM = "row_mask:0xf bank_mask:0xf"
def half_allreduce(op, x, t):
    a(f"v_mov_b32 {t}, {x}\nv_permlane32_swap_b32 {x}, {t}\n{op} {x}, {x}, {t}")
def rows_allreduce(op, x, t):
    half_allreduce(op, x, t)
    a(f"v_mov_b32 {t}, {x}\nv_permlane16_swap_b32 {x}, {t}\n{op} {x}, {x}, {t}")
def row_allreduce(op, x, rors=(8, 4, 2, 1)):
    for r in rors: a(f"{op}_dpp {x}, {x}, {x} row_ror:{r} {DPPM}")
def rbf(dst, src): a(f"v_cvt_pk_bf16_f32 {dst}, 0, {src}")
def reduce8_g(A):
    for i in range(4): a(f"v_permlane32_swap_b32 v{A+i}, v{A+i+4}")
    for i in range(4): a(f"v_add_f32 v{A+i}, v{A+i}, v{A+i+4}")
    for i in range(2): a(f"v_permlane16_swap_b32 v{A+i}, v{A+i+2}")
    for i in range(2): a(f"v_add_f32 v{A+i}, v{A+i}, v{A+i+2}")
def EX(mask): a(f"s_mov_b64 s[32:33], exec\ns_mov_b64 exec, {mask}")
def EXR(): a("s_mov_b64 exec, s[32:33]")

XA_l, XA_h = 12, 13
XG = 17
MX = 23
ACC = 24
S = 32; AC2 = 32
WB = 64; GL = 76; TL = 64
QR = 88
PQ = 48
PG = 240
KB = 112; VB = 176
NVGPR = 256
M_C10 = "s[34:35]"; M_R4 = "s[36:37]"; M_L32 = "s[54:55]"; M_GV = "s[50:51]"; M_B1 = "s[30:31]"; M_B0 = "s[52:53]"

a("s_load_dwordx16 s[4:19], s[0:1], 0\ns_load_dwordx8 s[20:27], s[0:1], 64")
stamp(0)
if DIAG: a("s_memrealtime s[90:91]")
a(f"""
s_cmp_ge_u32 s2, 256
s_cbranch_scc1 L_end
s_and_b32 s28, s2, 31
s_lshr_b32 s29, s2, 5
v_lshlrev_b32 v1, 4, v0                       ; kv offset = tid*16
v_lshrrev_b32 v2, 6, v0
v_and_b32 v0, 63, v0
v_readfirstlane_b32 s3, v2
v_lshrrev_b32 v15, 4, v0                      ; g
v_and_b32 v3, 15, v0                          ; c
v_mul_u32_u24 v5, 10, v2
v_add_u32 v5, v5, v15
v_lshlrev_b32 v10, 13, v5
v_lshl_add_u32 v10, v3, 4, v10
v_mul_u32_u24 v9, 20, v0
v_lshrrev_b32 v6, 3, v0                       ; r
s_movk_i32 s39, 3456
v_mul_lo_u32 v11, v6, s39
v_and_b32 v7, 7, v0
v_lshl_add_u32 v11, v7, 4, v11
v_mov_b32 v97, 0
v_cmp_gt_u32 {M_C10}, 10, v3
v_cmp_gt_u32 {M_R4}, 4, v6
v_cmp_gt_u32 {M_L32}, 32, v0
v_and_b32 v7, 2, v0
v_cmp_ne_u32 {M_B1}, 0, v7
v_and_b32 v7, 1, v0
v_cmp_ne_u32 {M_B0}, 0, v7
s_lshl_b32 s38, s28, 23
s_lshl_b32 s39, s29, {13 if IL else 17}
s_add_u32 s38, s38, s39
s_add_u32 s38, s38, 7340032
s_min_u32 s46, s28, 26
s_lshl_b32 s40, s46, 7
s_lshl_b32 s41, s28, 8
s_mul_i32 s42, s29, {80*8192}
s_add_u32 s41, s41, s42
s_mul_i32 s42, s2, {REC}
s_mul_i32 s43, s28, {REC}
s_and_b32 s58, s3, 3
s_mul_i32 s58, s58, 20
s_mul_i32 s59, s29, 80
s_add_u32 s58, s58, s59
s_mul_i32 s59, s58, 3456
s_add_u32 s59, s59, s40
s_cmp_lt_u32 s28, 27
s_cselect_b64 {M_GV}, -1, 0
v_cndmask_b32 v11, 0, v11, {M_GV}
s_waitcnt lgkmcnt(0)
{"s_mov_b32 s94, s24" if DIAG else ""}
{"s_mov_b32 s95, s25" if DIAG else ""}
{"s_add_u32 s24, s24, 128" if DIAG else ""}
{"s_addc_u32 s25, s25, 0" if DIAG else ""}
s_add_u32 s44, s26, s42
s_addc_u32 s45, s27, 0
s_cmp_lg_u32 s3, 0
s_cbranch_scc1 L_noclear
v_mov_b32 v56, -1
v_mov_b32 v57, -1
v_mov_b32 v58, -1
v_mov_b32 v59, -1
v_lshlrev_b32 v60, 4, v0
global_store_dwordx4 v60, v[56:59], s[44:45] sc1
global_store_dwordx4 v60, v[56:59], s[44:45] offset:1024 sc1
global_store_dwordx4 v60, v[56:59], s[44:45] offset:2048 sc1
global_store_dwordx4 v60, v[56:59], s[44:45] offset:3072 sc1
v_add_u32 v61, 4096, v60
v_cmp_gt_u32 vcc, {(REC-4096)//16}, v0
s_and_saveexec_b64 s[32:33], vcc
global_store_dwordx4 v61, v[56:59], s[44:45] sc1
s_mov_b64 exec, s[32:33]
""")
a.label("L_noclear")
a(f"""
global_load_dwordx4 v[48:51], v9, s[4:5]
global_load_dword v52, v9, s[4:5] offset:16
s_add_u32 s6, s6, s38
s_addc_u32 s7, s7, 0
s_add_u32 s8, s8, s38
s_addc_u32 s9, s9, 0
s_add_u32 s10, s10, s41
s_addc_u32 s11, s11, 0
s_cmp_ge_u32 s3, 4
s_cselect_b32 s56, s18, s16
s_cselect_b32 s57, s19, s17
s_add_u32 s56, s56, s59
s_addc_u32 s57, s57, 0
s_add_u32 s48, s26, s43
s_addc_u32 s49, s27, 0
""")
stream = [("w", j) for j in range(3)] + [("g", i) for i in range(3)]
stream += [("k", j) for j in range(16)] + [("v", j) for j in range(TPOS)] + [("t", j) for j in range(6)] + [("v", j) for j in range(TPOS, 16)]
issued = [0]
order = []
def issue_next():
    if issued[0] >= len(stream): return
    kind, j = stream[issued[0]]
    order.append((kind, j))
    issued[0] += 1
    if kind == "w":
        if j == 2: EX(M_L32)
        a(f"global_load_dwordx4 {v4(WB+4*j)}, v10, s[10:11] nt")
        if j == 2: EXR()
        else: a("s_add_u32 s10, s10, 32768\ns_addc_u32 s11, s11, 0")
    elif kind in "kv":
        lo = 6 if kind == "k" else 8
        B = KB if kind == "k" else VB
        a(f"global_load_dwordx4 {v4(B+4*j)}, v1, s[{lo}:{lo+1}] nt")
        if j < 15: a(f"s_add_u32 s{lo}, s{lo}, {65536 if IL else 8192}\ns_addc_u32 s{lo+1}, s{lo+1}, 0")
    elif kind == "g":
        if j == 2: EX(M_R4)
        a(f"global_load_dwordx4 {v4(GL+4*j)}, v11, s[56:57] nt")
        if j == 2: EXR()
        else: a(f"s_add_u32 s56, s56, {8*3456}\ns_addc_u32 s57, s57, 0")
    elif kind == "t":
        EX(M_C10)
        if j < 4:
            a(f"global_load_dwordx4 {v4(TL+4*j)}, v98, s[{12 if j < 2 else 14}:{13 if j < 2 else 15}] offset:{(j&1)*1280} nt")
        else:
            a(f"global_load_dwordx4 {v4(TL+4*j)}, v99, s[20:21] offset:{(j&1)*1280} nt")
        EXR()
def wait_for(item):
    i = order.index(item)
    a(f"s_waitcnt vmcnt({len(order) - 1 - i})")
def refill(done_item):
    i = order.index(done_item)
    while issued[0] < len(stream) and len(order) - 1 - i < D:
        if TILE_LATE and stream[issued[0]][0] == "t": break
        issue_next()

for _ in range(6): issue_next()
if B0: a("s_barrier")
for _ in range(KINIT): issue_next()
a(f"s_waitcnt vmcnt({6 + KINIT})")
stamp(1)
a(f"""
s_cmp_lg_u32 s3, 0
s_cbranch_scc1 L_nosig
v_mov_b32 v57, 1
s_lshl_b32 s38, s28, 2
v_mov_b32 v58, s38
v_cmp_eq_u32 vcc, 0, v0
s_and_saveexec_b64 s[32:33], vcc
global_atomic_add v58, v57, s[24:25] sc1
s_mov_b64 exec, s[32:33]
""")
a.label("L_nosig")
for k in range(5):
    a(f"v_lshlrev_b32 v{24+k}, 16, v{48+k}\nv_and_b32 v{32+k}, 0xffff0000, v{48+k}")
a("""
v_add_f32 v53, v24, v32
v_add_f32 v54, v25, v33
v_add_f32 v55, v26, v34
v_add_f32 v56, v27, v35
v_add_f32 v57, v28, v36
v_add_f32 v53, v53, v54
v_add_f32 v55, v55, v56
v_add_f32 v53, v53, v57
v_add_f32 v53, v53, v55
""")
row_allreduce("v_add_f32", "v53")
rows_allreduce("v_add_f32", "v53", "v54")
a("v_mul_f32 v53, 0x3acccccd, v53")
XS = [24, 25, 26, 27, 28, 32, 33, 34, 35, 36]
a("v_sub_f32 v55, v24, v53\nv_mul_f32 v54, v55, v55")
for r in XS[1:]:
    a(f"v_sub_f32 v55, v{r}, v53\nv_fmac_f32 v54, v55, v55")
row_allreduce("v_add_f32", "v54")
rows_allreduce("v_add_f32", "v54", "v55")
a("v_mul_f32 v54, 0x3acccccd, v54")
rbf("v53", "v53"); rbf("v54", "v54")
a("v_add_f32 v54, 0x3727c5ac, v54")
rbf("v54", "v54")
a("""
v_sqrt_f32 v55, v54
v_rcp_f32 v56, v55
v_fma_f32 v57, -v55, v55, v54
v_mul_f32 v56, 0.5, v56
v_fma_f32 v55, v57, v56, v55
""")
rbf("v55", "v55")
a("v_rcp_f32 v56, v55")
for r in XS: a(f"v_sub_f32 v{r}, v{r}, v53")
for r in XS: rbf(v(r), v(r))
for r in XS:
    a(f"v_mul_f32 v57, v{r}, v56\nv_fma_f32 v58, -v57, v55, v{r}\nv_fma_f32 v{r}, v58, v56, v57")
for k in range(5): a(f"v_cvt_pk_bf16_f32 v{48+k}, v{24+k}, v{32+k}")
for k in range(5): a(f"ds_write_b32 v9, v{48+k} offset:{XN+4*k}")
a(f"""
s_mul_i32 s38, s3, 20
s_mul_i32 s39, s29, 160
s_add_u32 s38, s38, s39
v_lshlrev_b32 v5, 3, v3
v_lshl_add_u32 v5, v15, 1, v5
v_add_u32 v5, s38, v5
ds_read_u16 v{XA_l}, v5 offset:{XN}
s_lshl_b32 s38, s58, 1
v_lshrrev_b32 v6, 3, v0
v_lshl_add_u32 v6, v6, 1, s38
ds_read_u16 v{XG}, v6 offset:{XN}
ds_read_u16 v{XG+2}, v6 offset:{XN+16}
ds_read_u16 v{XG+4}, v6 offset:{XN+32}
""")
for i in range(16): a(f"v_mov_b32 v{ACC+i}, 0")
a(f"""
s_waitcnt lgkmcnt(0)
v_lshlrev_b32 v{XA_h}, 16, v{XA_l}
v_lshlrev_b32 v{XG+1}, 16, v{XG}
v_lshlrev_b32 v{XG+3}, 16, v{XG+2}
v_lshlrev_b32 v{XG+5}, 16, v{XG+4}
""")
for j in range(3):
    wait_for(("w", j))
    if j == 2: EX(M_L32)
    for i in range(4):
        a(f"v_dot2c_f32_bf16_dpp v{ACC+2*i}, v{XA_l}, v{WB+4*j+i} row_newbcast:{j} {DPPM}")
        a(f"v_dot2c_f32_bf16_dpp v{ACC+2*i+1}, v{XA_h}, v{WB+4*j+i} row_newbcast:{j} {DPPM}")
    if j == 2: EXR()
    refill(("w", j))
reduce8_g(ACC)
a(f"""
v_lshlrev_b32 v4, 5, v3
v_lshl_add_u32 v4, v15, 3, v4
s_mul_i32 s38, s3, {R1S}
v_add_u32 v5, s38, v4
ds_write_b64 v5, v[{ACC}:{ACC+1}] offset:{RED1}
""")
for j in range(3):
    wait_for(("g", j))
    if j == 2: EX(M_R4)
    for i in range(4):
        a(f"v_dot2c_f32_bf16 v{AC2+2*i}, v{XG+2*j}, v{GL+4*j+i}")
        a(f"v_dot2c_f32_bf16 v{AC2+2*i+1}, v{XG+2*j+1}, v{GL+4*j+i}")
    if j == 2: EXR()
    refill(("g", j))
reduce8_g(AC2)
a(f"""
v_add_f32_dpp v{AC2}, v{AC2}, v{AC2} row_ror:8 row_mask:0xf bank_mask:0x3
v_add_f32_dpp v{AC2}, v{AC2+1}, v{AC2+1} row_ror:8 row_mask:0xf bank_mask:0xc
v_and_b32 v5, 7, v0
v_lshlrev_b32 v5, 5, v5
v_lshrrev_b32 v6, 5, v0
v_lshl_add_u32 v5, v6, 4, v5
v_bfe_u32 v6, v0, 4, 1
v_lshl_add_u32 v5, v6, 3, v5
v_bfe_u32 v6, v0, 3, 1
v_lshl_add_u32 v5, v6, 2, v5
s_mul_i32 s38, s3, {R1S}
v_add_u32 v5, s38, v5
ds_write_b32 v5, v{AC2} offset:{RED1+512}
s_waitcnt lgkmcnt(0)
s_barrier
v_and_b32 v6, 31, v0
v_lshrrev_b32 v7, 5, v0
s_cmp_ge_u32 s3, 4
s_cbranch_scc1 L_glupub
v_mul_u32_u24 v7, {4*R1S}, v7
v_lshl_add_u32 v7, v6, 2, v7
s_lshl_b32 s38, s3, 7
v_add_u32 v7, s38, v7
ds_read_b32 v48, v7 offset:{RED1}
ds_read_b32 v49, v7 offset:{RED1+R1S}
ds_read_b32 v50, v7 offset:{RED1+2*R1S}
ds_read_b32 v51, v7 offset:{RED1+3*R1S}
s_add_u32 s38, s38, {R_Q}
v_lshl_add_u32 v6, v6, 2, s38
s_waitcnt lgkmcnt(0)
v_add_f32 v48, v48, v49
v_add_f32 v50, v50, v51
v_add_f32 v48, v48, v50
s_branch L_pub0
""")
a.label("L_glupub")
a(f"""
v_mul_u32_u24 v7, {2*R1S}, v7
v_lshl_add_u32 v7, v6, 2, v7
s_and_b32 s38, s3, 1
s_lshl_b32 s38, s38, 7
s_bfe_u32 s39, s3, 0x10001
s_mul_i32 s40, s39, {4*R1S}
s_add_u32 s40, s40, s38
v_add_u32 v7, s40, v7
ds_read_b32 v48, v7 offset:{RED1+512}
ds_read_b32 v49, v7 offset:{RED1+512+R1S}
s_lshl_b32 s39, s39, 8
s_add_u32 s39, s39, s38
s_add_u32 s39, s39, {R_GLU}
v_lshl_add_u32 v6, v6, 2, s39
s_waitcnt lgkmcnt(0)
v_add_f32 v48, v48, v49
""")
a.label("L_pub0")
half_allreduce("v_add_f32", "v48", "v49")
a(f"v_min_u32 v48, 0xfffffffe, v48")
EX(M_L32)
a("global_store_dword v6, v48, s[44:45] sc1")
if 2 <= DUAL < 4: a("global_store_dword v6, v48, s[44:45]")
if DUAL >= 4: a(f"global_store_dword v6, v48, s[44:45] offset:{FOFF}")
EXR()
order.append(("pub", 0))
stamp(2)
a(f"""
s_lshl_b32 s38, s3, 4
v_lshl_add_u32 v98, v15, 1, s38
s_movk_i32 s39, 1280
v_mul_lo_u32 v98, v98, s39
v_lshl_add_u32 v98, v3, 4, v98
s_lshl_b32 s38, s3, 3
v_lshl_add_u32 v2, v15, 1, s38                ; 8w + 2g
v_mul_lo_u32 v99, v2, s39
v_lshl_add_u32 v99, v3, 4, v99
v_cndmask_b32 v99, 0, v99, {M_GV}
s_mul_i32 s38, s28, {128*1280}
s_mul_i32 s40, s29, 160
s_add_u32 s38, s38, s40
s_add_u32 s12, s12, s38
s_addc_u32 s13, s13, 0
s_mul_i32 s38, s46, {64*1280}
s_add_u32 s38, s38, s40
s_add_u32 s20, s20, s38
s_addc_u32 s21, s21, 0
s_add_u32 s14, s12, {8*1280}
s_addc_u32 s15, s13, 0
v_lshrrev_b32 v92, 5, v0
v_mul_u32_u24 v92, {32*REC}, v92
v_and_b32 v8, 31, v0
v_lshl_add_u32 v92, v8, 4, v92
v_add_u32 v93, {64*REC}, v92
v_add_u32 v94, {128*REC}, v92
v_add_u32 v95, {192*REC}, v92
v_lshlrev_b32 v8, 2, v8
s_cmp_eq_u32 s3, 0
s_cselect_b32 s58, {2 if NOEX else 0}, 2
s_add_u32 s42, s48, {FOFF}
s_addc_u32 s43, s49, 0
""")
def cnt_issue(): a("global_load_dword v96, v8, s[24:25] sc1")
def data_issue(fast=False):
    b = "s[42:43]" if fast else "s[48:49]"
    for k in range(4): a(f"global_load_dwordx4 {v4(PQ+4*k)}, v{92+k}, {b} offset:{R_Q} sc1")
    for k in range(4): a(f"global_load_dwordx4 {v4(PG+4*k)}, v{92+k}, {b} offset:{R_GLU} sc1")
def checkpoint(n, first=False, fast=False):
    a(f"s_cmp_eq_u32 s58, 2\ns_cbranch_scc1 L_ck{n}_skip")
    if first:
        cnt_issue()
    else:
        a(f"""
s_cmp_eq_u32 s58, 1
s_cbranch_scc1 L_ck{n}_data
v_readlane_b32 s38, v96, s28
s_cmp_ge_u32 s38, 8
s_cbranch_scc1 L_ck{n}_cntok
""")
        cnt_issue()
        a(f"s_branch L_ck{n}_skip")
        a.label(f"L_ck{n}_data")
        regs = list(range(PQ, PQ+16)) + list(range(PG, PG+16))
        a(f"v_max3_u32 v100, v{regs[0]}, v{regs[1]}, v{regs[2]}")
        a(f"v_max3_u32 v101, v{regs[3]}, v{regs[4]}, v{regs[5]}")
        rest = regs[6:]
        for i in range(0, len(rest), 2):
            a(f"v_max3_u32 v{100+(i//2)%2}, v{100+(i//2)%2}, v{rest[i]}, v{rest[i+1]}")
        a(f"""
v_max_u32 v100, v100, v101
v_cmp_eq_u32 vcc, -1, v100
s_cbranch_vccnz L_ck{n}_cntok
s_mov_b32 s58, 2
s_branch L_ck{n}_skip
""")
        a.label(f"L_ck{n}_cntok")
        a("s_mov_b32 s58, 1")
        data_issue(fast and DUAL >= 4)
    a.label(f"L_ck{n}_skip")
kv_items = [("k", j) for j in range(16)] + [("v", j) for j in range(B2_AT + 1)]
nck = 0
started = False
mark = None
for it in kv_items:
    if order.index(it) < 6 + KINIT - 100: continue
    wait_for(it)
    if it[0] == "k" and it[1] % 4 == 3 and it[1] > 8: stamp(8 + it[1] // 4)
    if not started and it[1] >= CNT_AT:
        checkpoint(nck, first=True); nck += 1; started = True; mark = len(order)
    elif started and order.index(it) >= mark:
        checkpoint(nck, fast=True); nck += 1
        mark = len(order)
    refill(it)
a(f"s_cmp_lg_u32 s3, 0\ns_cbranch_scc1 L_b2")
a(f"s_cmp_eq_u32 s58, 2\ns_cbranch_scc1 L_pqok\ns_waitcnt vmcnt({len(order) - mark})")
checkpoint(nck); nck += 1
a("s_mov_b32 s47, 0")
a.label("L_pqloop")
a(f"""
s_cmp_eq_u32 s58, 2
s_cbranch_scc1 L_pqok
s_add_u32 s47, s47, 1
s_cmp_ge_u32 s47, {SPIN_MAX}
s_cbranch_scc1 L_pqok
s_waitcnt vmcnt(0)
""")
checkpoint(nck, fast=True)
a("s_waitcnt vmcnt(0)")
checkpoint(nck + 1)
a("s_branch L_pqloop")
a.label("L_pqok")
for i in range(4):
    a(f"v_add_f32 v{PQ+i}, v{PQ+i}, v{PQ+4+i}\nv_add_f32 v{PQ+8+i}, v{PQ+8+i}, v{PQ+12+i}")
    a(f"v_add_f32 v{PG+i}, v{PG+i}, v{PG+4+i}\nv_add_f32 v{PG+8+i}, v{PG+8+i}, v{PG+12+i}")
for i in range(4):
    a(f"v_add_f32 v{PQ+i}, v{PQ+i}, v{PQ+8+i}\nv_add_f32 v{PG+i}, v{PG+i}, v{PG+8+i}")
for i in range(4):
    half_allreduce("v_add_f32", v(PQ+i), v(PQ+4+i))
    half_allreduce("v_add_f32", v(PG+i), v(PG+4+i))
a(f"""
v_cvt_pk_bf16_f32 v{PQ+4}, v{PQ}, v{PQ+1}
v_cvt_pk_bf16_f32 v{PQ+5}, v{PQ+2}, v{PQ+3}
v_lshlrev_b32 v5, 1, v8                       ; (l&31)*8
ds_write_b64 v5, v[{PQ+4}:{PQ+5}] offset:{QF}
""")
for i in range(4):
    rbf(v(PG+i), v(PG+i))
for i in range(4):
    a(f"v_mov_b32 v{PG+4+i}, v{PG+i}\nv_permlane16_swap_b32 v{PG+i}, v{PG+4+i}")
for i in range(4):
    g_, u_, t0, t1 = PG+i, PG+4+i, PG+8+i, PG+12+i
    a(f"""
v_mul_f32 v{g_}, {LOG2E ^ 0x80000000:#x}, v{g_}
v_min_f32 v{g_}, 0x42fc0000, v{g_}
v_exp_f32 v{g_}, v{g_}
v_add_f32 v{g_}, 1.0, v{g_}
v_rcp_f32 v{t0}, v{g_}
v_fma_f32 v{t1}, -v{t0}, v{g_}, 1.0
v_fma_f32 v{t0}, v{t1}, v{t0}, v{t0}
""")
    rbf(v(t0), v(t0))
    a(f"v_mul_f32 v{t0}, v{t0}, v{u_}\nv_cndmask_b32 v{t0}, 0, v{t0}, {M_GV}")
a(f"""
v_cvt_pk_bf16_f32 v{PG}, v{PG+8}, v{PG+9}
v_cvt_pk_bf16_f32 v{PG+1}, v{PG+10}, v{PG+11}
v_lshlrev_b32 v5, 3, v3
ds_write_b64 v5, v[{PG}:{PG+1}] offset:{HF}
s_waitcnt lgkmcnt(0)
""")
a.label("L_b2")
a(f"""
s_barrier
v_lshlrev_b32 v6, 4, v3
ds_read_b128 {v4(QR)}, v6 offset:{QF}
""")
for j in range(16): a(f"v_mov_b32 v{S+j}, 0")
a("s_waitcnt lgkmcnt(0)")
for i in range(4):
    for j in range(16):
        a(f"v_dot2c_f32_bf16 v{S+j}, v{KB+4*j+i}, v{QR+i}")
for i in range(8):
    a(f"v_add_f32_dpp v{S+i}, v{S+i}, v{S+i} row_ror:8 row_mask:0xf bank_mask:0x3")
    a(f"v_add_f32_dpp v{S+i}, v{S+i+8}, v{S+i+8} row_ror:8 row_mask:0xf bank_mask:0xc")
for i in range(4):
    a(f"v_add_f32_dpp v{S+i}, v{S+i}, v{S+i} row_half_mirror row_mask:0xf bank_mask:0x5")
    a(f"v_add_f32_dpp v{S+i}, v{S+i+4}, v{S+i+4} row_half_mirror row_mask:0xf bank_mask:0xa")
a(f"""
v_cndmask_b32 v{S+4}, v{S}, v{S+2}, {M_B1}
v_cndmask_b32 v{S+5}, v{S+2}, v{S}, {M_B1}
v_cndmask_b32 v{S+6}, v{S+1}, v{S+3}, {M_B1}
v_cndmask_b32 v{S+7}, v{S+3}, v{S+1}, {M_B1}
v_add_f32_dpp v{S}, v{S+5}, v{S+4} quad_perm:[2,3,0,1] {DPPM}
v_add_f32_dpp v{S+1}, v{S+7}, v{S+6} quad_perm:[2,3,0,1] {DPPM}
v_cndmask_b32 v{S+2}, v{S}, v{S+1}, {M_B0}
v_cndmask_b32 v{S+3}, v{S+1}, v{S}, {M_B0}
v_add_f32_dpp v{S}, v{S+3}, v{S+2} quad_perm:[1,0,3,2] {DPPM}
""")
rbf(v(S), v(S))
a(f"v_mul_f32 v{S}, {SCALE:#x}, v{S}")
rbf(v(S), v(S))
a(f"v_mov_b32 v{S+1}, v{S}")
row_allreduce("v_max_f32", v(S+1))
rows_allreduce("v_max_f32", v(S+1), v(S+2))
a(f"""
s_lshl_b32 s38, s3, 2
v_mov_b32 v6, s38
ds_write_b32 v6, v{S+1} offset:{MAXA}
s_waitcnt lgkmcnt(0)
s_barrier
v_and_b32 v7, 7, v0
v_lshlrev_b32 v7, 2, v7
ds_read_b32 v{S+1}, v7 offset:{MAXA}
s_waitcnt lgkmcnt(0)
""")
row_allreduce("v_max_f32", v(S+1), (4, 2, 1))
PL, PH = S + 2, S + 3
a(f"""
v_mov_b32 v{MX}, v{S+1}
v_sub_f32 v{S}, v{S}, v{S+1}
v_mul_f32 v{S}, {LOG2E:#x}, v{S}
v_exp_f32 v{S}, v{S}
v_cvt_pk_bf16_f32 v{PL}, v{S}, 0
v_cvt_pk_bf16_f32 v{PH}, 0, v{S}
""")
row_allreduce("v_add_f32", v(S))
rows_allreduce("v_add_f32", v(S), v(S+4))
a(f"ds_write_b32 v6, v{S} offset:{LRED}")
stamp(3)
for i in range(8): a(f"v_mov_b32 v{ACC+i}, 0")
B2_ITEM = ("v", B2_AT) if B2_AT >= 0 else ("k", 15)
pos_b2 = stream.index(B2_ITEM)
last_v = stream.index(("v", 15))
for pi, it in enumerate(stream):
    if it[0] not in "vt" or pi > last_v: continue
    if pi > pos_b2:
        wait_for(it)
        refill(it)
    elif pi == stream.index(("v", 0)):
        refill(B2_ITEM)
    if pi == last_v:
        while issued[0] < len(stream): issue_next()
    if it[0] == "v":
        j = it[1]
        if j % 4 == 3: stamp(12 + j // 4)
        for i in range(4):
            a(f"v_dot2c_f32_bf16_dpp v{ACC+2*i}, v{PL}, v{VB+4*j+i} row_newbcast:{j} {DPPM}")
            a(f"v_dot2c_f32_bf16_dpp v{ACC+2*i+1}, v{PH}, v{VB+4*j+i} row_newbcast:{j} {DPPM}")
reduce8_g(ACC)
a(f"""
s_lshl_b32 s38, s3, 9
v_add_u32 v5, s38, v4
ds_write_b64 v5, v[{ACC}:{ACC+1}] offset:{RED2}
s_waitcnt lgkmcnt(0)
s_barrier
""")
stamp(4)
if DIAG: a("s_memrealtime s[96:97]")
def sum_part(RED, stride):
    a(f"""
v_and_b32 v6, 31, v0
v_lshrrev_b32 v7, 5, v0
v_mul_u32_u24 v7, {4*stride}, v7
v_lshl_add_u32 v7, v6, 2, v7
s_lshl_b32 s38, s3, 7
v_add_u32 v7, s38, v7
ds_read_b32 v48, v7 offset:{RED}
ds_read_b32 v49, v7 offset:{RED+stride}
ds_read_b32 v50, v7 offset:{RED+2*stride}
ds_read_b32 v51, v7 offset:{RED+3*stride}
""")
def sum_fin(off):
    a(f"""
v_lshl_add_u32 v6, v6, 2, s38
s_waitcnt lgkmcnt(0)
v_add_f32 v48, v48, v49
v_add_f32 v50, v50, v51
v_add_f32 v48, v48, v50
""")
    half_allreduce("v_add_f32", "v48", "v49")
    a("v_min_u32 v48, 0xfffffffe, v48")
    EX(M_L32)
    a(f"global_store_dword v6, v48, s[44:45] offset:{off} sc1")
    EXR()
a(f"""
v_and_b32 v5, 7, v0
v_lshrrev_b32 v6, 3, v0
v_lshlrev_b32 v6, 9, v6
v_lshl_add_u32 v6, v5, 3, v6
s_lshl_b32 s38, s3, 6
v_add_u32 v6, s38, v6
ds_read_b64 v[48:49], v6 offset:{RED2}
v_lshlrev_b32 v7, 2, v5
ds_read_b32 v51, v7 offset:{LRED}
v_lshlrev_b32 v7, 1, v2
ds_read_b32 v58, v7 offset:{HF}
s_lshl_b32 s38, s3, 7
v_lshl_add_u32 v5, v5, 4, s38                 ; 128 w + 16 i
v_lshrrev_b32 v6, 1, v3
v_mul_u32_u24 v6, {32*REC}, v6
v_and_b32 v7, 1, v3
v_lshl_add_u32 v7, v7, 2, v15
v_lshl_add_u32 v9, v7, 4, v6
v_add_u32 v9, s38, v9
v_cmp_gt_u32 vcc, 8, v0
s_waitcnt lgkmcnt(0)
v_add_f32_dpp v48, v48, v48 row_ror:8 {DPPM}
v_add_f32_dpp v49, v49, v49 row_ror:8 {DPPM}
v_add_f32_dpp v51, v51, v51 row_ror:4 {DPPM}
v_mov_b32 v52, v48
v_mov_b32 v53, v49
v_add_f32_dpp v51, v51, v51 row_ror:2 {DPPM}
v_permlane32_swap_b32 v48, v52
v_permlane32_swap_b32 v49, v53
v_add_f32 v48, v48, v52
v_add_f32 v49, v49, v53
v_add_f32_dpp v51, v51, v51 row_ror:1 {DPPM}
v_mov_b32 v52, v48
v_mov_b32 v53, v49
v_min_u32 v50, 0xfffffffe, v{MX}
v_permlane16_swap_b32 v48, v52
v_permlane16_swap_b32 v49, v53
v_add_f32 v48, v48, v52
v_add_f32 v49, v49, v53
v_min_u32 v51, 0xfffffffe, v51
v_min_u32 v48, 0xfffffffe, v48
v_min_u32 v49, 0xfffffffe, v49
s_and_saveexec_b64 s[32:33], vcc
{"global_store_dwordx4 v5, v[48:51], s[44:45] offset:%d" % R_O2 if DUAL >= 3 else ""}
global_store_dwordx4 v5, v[48:51], s[44:45] offset:{R_O} sc1
{"global_store_dwordx4 v5, v[48:51], s[44:45] offset:%d" % R_O if 0 < DUAL < 3 else ""}
s_mov_b64 exec, s[32:33]
""")
def pissue(k):
    a(f"global_load_dwordx4 v[{100+4*k}:{103+4*k}], v9, s[48:49] offset:{R_O2 if DUAL >= 3 else R_O} {FASTF if DUAL >= 3 else 'sc1'}")
assert NPOLL <= 3
pissue(0)
stamp(8)
a(f"""
s_cmp_lg_u32 s28, s29
s_cbranch_scc1 L_nofc
s_cmp_lg_u32 s3, 7
s_cbranch_scc1 L_nofc
s_mov_b32 s47, 0
""")
a.label("L_poll_c")
a(f"""
global_load_dword v48, v8, s[24:25] sc1
s_waitcnt vmcnt(0)
v_cmp_gt_u32 vcc, 8, v48
s_cbranch_vccz L_nofc
s_add_u32 s47, s47, 1
s_cmp_lt_u32 s47, {SPIN_MAX}
s_cbranch_scc1 L_poll_c
""")
a.label("L_nofc")
for i in range(16): a(f"v_mov_b32 v{ACC+i}, 0")
a(f"""
v_and_b32 v49, 0xffff, v58
v_lshlrev_b32 v50, 16, v58
v_lshrrev_b32 v51, 16, v58
v_and_b32 v52, 0xffff0000, v58
s_waitcnt vmcnt({3 if DUAL else 2})
""")
for i in range(2):
    for k in range(4):
        a(f"v_cndmask_b32 v{TL+16+4*i+k}, 0, v{TL+16+4*i+k}, {M_GV}")
for i in range(2):
    for k in range(4):
        a(f"v_dot2c_f32_bf16 v{AC2+2*k}, v{49+2*i}, v{TL+16+4*i+k}")
        a(f"v_dot2c_f32_bf16 v{AC2+2*k+1}, v{50+2*i}, v{TL+16+4*i+k}")
a("s_mov_b32 s47, 0")
for k in range(1, NPOLL - 1):
    pissue(k)
    a(f"s_sleep {POLLGAP}")
a.label("L_poll_o")
if POLLNT:
    assert NPOLL == 1
    for t in range(POLLNT + 1):
        a(f"""
s_waitcnt vmcnt(0)
v_max3_u32 v52, v100, v101, v102
v_max_u32 v52, v52, v103
v_cmp_eq_u32 vcc, -1, v52
s_cbranch_vccz L_poll_o_ok0
global_load_dwordx4 v[100:103], v9, s[48:49] offset:{(R_O2 if DUAL >= 3 else R_O) if t < POLLNT else R_O} {FASTF if t < POLLNT else "sc1"}
""")
else:
  for k in range(NPOLL):
    if NPOLL > 1: pissue((k + NPOLL - 1) % NPOLL)
    b = 100 + 4*k
    a(f"""
s_waitcnt vmcnt({NPOLL-1})
v_max3_u32 v52, v{b}, v{b+1}, v{b+2}
v_max_u32 v52, v52, v{b+3}
v_cmp_eq_u32 vcc, -1, v52
s_cbranch_vccz L_poll_o_ok{k}
""")
    if NPOLL == 1:
        if PSLEEP: a(f"s_sleep {PSLEEP}")
        pissue(0)
a(f"""
s_add_u32 s47, s47, 1
s_cmp_lt_u32 s47, {SPIN_MAX}
s_cbranch_scc1 L_poll_o
""")
for k in range(NPOLL):
    a.label(f"L_poll_o_ok{k}")
    for i in range(4): a(f"v_mov_b32 v{48+i}, v{100+4*k+i}")
    if k < NPOLL - 1: a("s_branch L_poll_o_ok")
a.label("L_poll_o_ok")
stamp(5)
if STAMPS: a("s_mov_b32 s78, s47\ns_mov_b32 s79, 0")
a("v_mov_b32 v52, v50")
row_allreduce("v_max_f32", "v52", (8, 4, 2))
a(f"""
v_sub_f32 v50, v50, v52
v_mul_f32 v50, {LOG2E:#x}, v50
v_exp_f32 v50, v50
v_mul_f32 v51, v51, v50
v_mul_f32 v48, v48, v50
v_mul_f32 v49, v49, v50
""")
for r in (8, 4, 2):
    for x in (51, 48, 49):
        a(f"v_add_f32_dpp v{x}, v{x}, v{x} row_ror:{r} {DPPM}")
a(f"""
v_rcp_f32 v52, v51
v_mul_f32 v53, v48, v52
v_mul_f32 v54, v49, v52
v_fma_f32 v55, -v53, v51, v48
v_fma_f32 v56, -v54, v51, v49
v_fma_f32 v53, v55, v52, v53
v_fma_f32 v54, v56, v52, v54
v_cvt_pk_bf16_f32 v55, v53, 0
v_cvt_pk_bf16_f32 v56, 0, v53
v_cvt_pk_bf16_f32 v57, v54, 0
v_cvt_pk_bf16_f32 v58, 0, v54
""")
for j in range(4):
    lo = 55 + 2*(j & 1)
    for i in range(4):
        a(f"v_dot2c_f32_bf16_dpp v{ACC+2*i}, v{lo}, v{TL+4*j+i} row_newbcast:{j>>1} {DPPM}")
        a(f"v_dot2c_f32_bf16_dpp v{ACC+2*i+1}, v{lo+1}, v{TL+4*j+i} row_newbcast:{j>>1} {DPPM}")
for i in range(8): a(f"v_permlane32_swap_b32 v{ACC+i}, v{AC2+i}")
for i in range(8): a(f"v_add_f32 v{ACC+i}, v{ACC+i}, v{AC2+i}")
for i in range(4): a(f"v_permlane16_swap_b32 v{ACC+i}, v{ACC+i+4}")
for i in range(4): a(f"v_add_f32 v{ACC+i}, v{ACC+i}, v{ACC+i+4}")
a(f"""
v_lshrrev_b32 v6, 1, v15
v_mul_u32_u24 v6, 320, v6
v_lshl_add_u32 v6, v3, 5, v6
v_and_b32 v7, 1, v15
v_lshl_add_u32 v6, v7, 4, v6
s_mul_i32 s38, s3, 640
v_add_u32 v6, s38, v6
""")
EX(M_C10)
a(f"ds_write_b128 v6, v[{ACC}:{ACC+3}] offset:{RED3}")
EXR()
a(f"""
s_waitcnt lgkmcnt(0)
s_barrier
s_cmp_gt_u32 s3, 4
s_cbranch_scc1 L_pub2done
""")
sum_part(RED3, 640)
sum_fin(R_Y)
a.label("L_pub2done")
stamp(6)
a(f"""
s_cmp_lg_u32 s28, s29
s_cbranch_scc1 L_fin_end
s_mul_i32 s38, s29, {32*REC}
s_mul_i32 s39, s3, {4*REC}
s_add_u32 s38, s38, s39
s_add_u32 s38, s38, {R_Y}
s_add_u32 s40, s26, s38
s_addc_u32 s41, s27, 0
s_add_u32 s42, s40, {2*REC}
s_addc_u32 s43, s41, 0
v_lshlrev_b32 v6, 4, v0
v_add_u32 v10, {REC}, v6
s_mul_i32 s38, s29, 160
s_lshl_b32 s39, s3, 5
s_add_u32 s38, s38, s39
v_lshl_add_u32 v8, v3, 1, s38
v_min_u32 v8, 1278, v8
global_load_ushort v9, v8, s[4:5]
v_cmp_gt_u32 vcc, 40, v0
s_and_saveexec_b64 s[32:33], vcc
s_mov_b32 s47, 0
""")
a.label("L_poll_y")
a(f"""
global_load_dwordx4 v[24:27], v6, s[40:41] sc1
global_load_dwordx4 v[28:31], v10, s[40:41] sc1
global_load_dwordx4 v[32:35], v6, s[42:43] sc1
global_load_dwordx4 v[36:39], v10, s[42:43] sc1
s_waitcnt vmcnt(0)
v_max3_u32 v48, v24, v25, v26
v_max3_u32 v49, v27, v28, v29
v_max3_u32 v50, v30, v31, v32
v_max3_u32 v51, v33, v34, v35
v_max3_u32 v52, v36, v37, v38
v_max3_u32 v48, v48, v49, v39
v_max3_u32 v50, v50, v51, v52
v_max_u32 v48, v48, v50
v_cmp_eq_u32 vcc, -1, v48
s_cbranch_vccz L_poll_y_ok
s_add_u32 s47, s47, 1
s_cmp_lt_u32 s47, {SPIN_MAX}
s_cbranch_scc1 L_poll_y
""")
a.label("L_poll_y_ok")
for i in range(4):
    a(f"v_add_f32 v{24+i}, v{24+i}, v{28+i}\nv_add_f32 v{32+i}, v{32+i}, v{36+i}")
for i in range(4):
    a(f"v_add_f32 v{24+i}, v{24+i}, v{32+i}")
a(f"""
s_mul_i32 s38, s3, 640
v_add_u32 v7, s38, v6
ds_write_b128 v7, v[24:27] offset:{RED4}
s_mov_b64 exec, s[32:33]
s_waitcnt lgkmcnt(0)
s_barrier
s_cmp_gt_u32 s3, 4
s_cbranch_scc1 L_fin_end
v_lshrrev_b32 v6, 1, v15
v_mul_u32_u24 v6, 320, v6
v_and_b32 v7, 1, v15
v_mul_u32_u24 v7, {4*640}, v7
v_add_u32 v6, v6, v7
v_lshl_add_u32 v6, v3, 2, v6
s_lshl_b32 s38, s3, 6
v_add_u32 v6, s38, v6
ds_read_b32 v48, v6 offset:{RED4}
ds_read_b32 v49, v6 offset:{RED4+640}
ds_read_b32 v50, v6 offset:{RED4+1280}
ds_read_b32 v51, v6 offset:{RED4+1920}
s_waitcnt lgkmcnt(0)
v_add_f32 v48, v48, v49
v_add_f32 v50, v50, v51
v_add_f32 v48, v48, v50
v_mov_b32 v49, v48
v_permlane16_swap_b32 v48, v49
v_add_f32 v48, v48, v49
""")
rbf("v48", "v48")
a(f"""
v_mov_b32 v49, v48
v_permlane32_swap_b32 v48, v49
v_lshlrev_b32 v9, 16, v9
v_add_f32 v48, v9, v48
""")
rbf("v48", "v48")
a(f"""
v_add_f32 v48, v48, v49
v_cvt_pk_bf16_f32 v48, v48, 0
v_cmp_gt_u32 vcc, 16, v0
s_and_saveexec_b64 s[32:33], vcc
global_store_short v8, v48, s[22:23]
s_mov_b64 exec, s[32:33]
""")
a.label("L_fin_end")
stamp(7)
if DIAG:
    a("""
s_memrealtime s[92:93]
s_waitcnt lgkmcnt(0)
s_cmp_lg_u32 s3, 0
s_cbranch_scc1 L_end
v_cmp_eq_u32 vcc, 0, v0
s_and_saveexec_b64 s[32:33], vcc
s_not_b32 s90, s90
v_mov_b32 v1, 0
v_mov_b32 v2, s90
v_mov_b32 v3, s92
v_mov_b32 v4, s96
global_atomic_umax v1, v2, s[94:95] sc1
global_atomic_umax v1, v3, s[94:95] offset:4 sc1
global_atomic_umax v1, v4, s[94:95] offset:8 sc1
""")
if STAMPS:
    a(f"""
s_waitcnt lgkmcnt(0)
s_cmp_lg_u32 s3, {STAMPWAVE}
s_cbranch_scc1 L_end
v_cmp_eq_u32 vcc, 0, v0
s_and_saveexec_b64 s[32:33], vcc
s_mul_i32 s38, s2, {NST*8}
s_add_u32 s38, s38, {STAMP_OFF}
v_mov_b32 v1, s38
""")
    for i in range(NST):
        a(f"v_mov_b32 v2, s{60+2*i}\nv_mov_b32 v3, s{61+2*i}\nglobal_store_dwordx2 v1, v[2:3], s[26:27] offset:{8*i}")
a.label("L_end")
a("s_endpgm")

hdr = open("parallel_sum__sliding_block_cached__glu_gated_glu__decode.s.ref").read().split("; Override")[0]
out = hdr + f"""; Override launch geometry by editing the next line (default: block=256,
; grid=ceil(out_elems/256), lds=0). Harness parses it; keep it on one line.
; @launch grid=(256,1,1) block=(512,1,1) lds={LDS_BYTES}
.amdgcn_target "amdgcn-amd-amdhsa--gfx950"
.text
.globl {NAME}
.p2align 8
.type {NAME},@function
{NAME}:
""" + a.render() + f""".section .rodata,"a"
.p2align 6
.amdhsa_kernel {NAME}
  .amdhsa_next_free_vgpr {NVGPR}
  .amdhsa_next_free_sgpr 102
  .amdhsa_accum_offset {NVGPR}
  .amdhsa_group_segment_fixed_size 0
  .amdhsa_kernarg_size 96
  .amdhsa_user_sgpr_count 2
  .amdhsa_user_sgpr_kernarg_segment_ptr 1
  .amdhsa_system_sgpr_workgroup_id_x 1
.end_amdhsa_kernel
"""
open(sys.argv[1], "w").write(out)
```

```python
import sys, os
from asmlib import Asm
NAME = "parallel_sum__sliding_block_cached__glu_gated_glu__decode_kernel"
E = lambda k, d: int(os.environ.get(k, str(d)))
STAMPS = E("STAMPS", 0); STAMPWAVE = E("STAMPWAVE", 0)
D = E("DEPTH", 6); KINIT = E("KINIT", 4); B2_AT = E("B2_AT", 0); TILE_LATE = E("TILE_LATE", 0)
FASTF = os.environ.get("FASTF", "sc1"); TOP1 = E("TOP1", 0); TOP2 = E("TOP2", 0); DIAG = E("DIAG", 0); TPOS = E("TPOS", 13); POLLNT = E("POLLNT", 3); DUAL = E("DUAL", 4); PSLEEP = E("PSLEEP", 0); IL = E("IL", 1); NPOLLY = E("NPOLLY", 1); B0 = E("B0", 0); NPOLL = E("NPOLL", 1); POLLGAP = E("POLLGAP", 2); NOEX = E("NOEX", 0); CNT_AT = E("CNT_AT", 0)
NST = 16
XN = 0
RED1 = 1280; R1S = 784
QF = RED1 + 8 * R1S
HF = QF + 256
OF = HF + 128
MAXA = OF + 256
LRED = MAXA + 64
RED2 = LRED + 64
RED3 = RED2 + 4096
RED4 = RED3 + 5120
LDS_BYTES = RED4 + 5120
assert QF % 16 == 0 and RED3 % 16 == 0 and RED4 % 16 == 0
REC = 4736
R_O = 0; R_ML = 512; R_GLU = 1024; R_Q = 1536; R_Y = 2048; R_O2 = 2688; FOFF = 2688
STAMP_OFF = 2 << 20
LOG2E = 0x3fb8aa3b
SCALE = 0x3db504f3
SPIN_MAX = 200000

a = Asm()
def stamp(i):
    if STAMPS: a(f"s_memrealtime s[{60+2*i}:{61+2*i}]")
def v(n): return f"v{n}"
def v4(n): return f"v[{n}:{n+3}]"
DPPM = "row_mask:0xf bank_mask:0xf"
def half_allreduce(op, x, t):
    a(f"v_mov_b32 {t}, {x}\nv_permlane32_swap_b32 {x}, {t}\n{op} {x}, {x}, {t}")
def rows_allreduce(op, x, t):
    half_allreduce(op, x, t)
    a(f"v_mov_b32 {t}, {x}\nv_permlane16_swap_b32 {x}, {t}\n{op} {x}, {x}, {t}")
def row_allreduce(op, x, rors=(8, 4, 2, 1)):
    for r in rors: a(f"{op}_dpp {x}, {x}, {x} row_ror:{r} {DPPM}")
def rbf(dst, src): a(f"v_cvt_pk_bf16_f32 {dst}, 0, {src}")
def reduce8_g(A):
    for i in range(4): a(f"v_permlane32_swap_b32 v{A+i}, v{A+i+4}")
    for i in range(4): a(f"v_add_f32 v{A+i}, v{A+i}, v{A+i+4}")
    for i in range(2): a(f"v_permlane16_swap_b32 v{A+i}, v{A+i+2}")
    for i in range(2): a(f"v_add_f32 v{A+i}, v{A+i}, v{A+i+2}")
def EX(mask): a(f"s_mov_b64 s[32:33], exec\ns_mov_b64 exec, {mask}")
def EXR(): a("s_mov_b64 exec, s[32:33]")

XA_l, XA_h = 12, 13
XG = 17
MX = 23
ACC = 24
S = 32; AC2 = 32
WB = 64; GL = 76; TL = 64
QR = 88
PQ = 48
PG = 240
KB = 112; VB = 176
NVGPR = 256
M_C10 = "s[34:35]"; M_R4 = "s[36:37]"; M_L32 = "s[54:55]"; M_GV = "s[50:51]"; M_B1 = "s[30:31]"; M_B0 = "s[52:53]"

a("s_load_dwordx16 s[4:19], s[0:1], 0\ns_load_dwordx8 s[20:27], s[0:1], 64")
stamp(0)
if DIAG: a("s_memrealtime s[90:91]")
a(f"""
s_cmp_ge_u32 s2, 256
s_cbranch_scc1 L_end
s_and_b32 s28, s2, 31
s_lshr_b32 s29, s2, 5
v_lshlrev_b32 v1, 4, v0                       ; kv offset = tid*16
v_lshrrev_b32 v2, 6, v0
v_and_b32 v0, 63, v0
v_readfirstlane_b32 s3, v2
v_lshrrev_b32 v15, 4, v0                      ; g
v_and_b32 v3, 15, v0                          ; c
v_mul_u32_u24 v5, 10, v2
v_add_u32 v5, v5, v15
v_lshlrev_b32 v10, 13, v5
v_lshl_add_u32 v10, v3, 4, v10
v_mul_u32_u24 v9, 20, v0
v_lshrrev_b32 v6, 3, v0                       ; r
s_movk_i32 s39, 3456
v_mul_lo_u32 v11, v6, s39
v_and_b32 v7, 7, v0
v_lshl_add_u32 v11, v7, 4, v11
v_mov_b32 v97, 0
v_cmp_gt_u32 {M_C10}, 10, v3
v_cmp_gt_u32 {M_R4}, 4, v6
v_cmp_gt_u32 {M_L32}, 32, v0
v_and_b32 v7, 2, v0
v_cmp_ne_u32 {M_B1}, 0, v7
v_and_b32 v7, 1, v0
v_cmp_ne_u32 {M_B0}, 0, v7
s_lshl_b32 s38, s28, 23
s_lshl_b32 s39, s29, {13 if IL else 17}
s_add_u32 s38, s38, s39
s_add_u32 s38, s38, 7340032
s_min_u32 s46, s28, 26
s_lshl_b32 s40, s46, 7
s_lshl_b32 s41, s28, 8
s_mul_i32 s42, s29, {80*8192}
s_add_u32 s41, s41, s42
s_mul_i32 s42, s2, {REC}
s_mul_i32 s43, s28, {REC}
s_and_b32 s58, s3, 3
s_mul_i32 s58, s58, 20
s_mul_i32 s59, s29, 80
s_add_u32 s58, s58, s59
s_mul_i32 s59, s58, 3456
s_add_u32 s59, s59, s40
s_cmp_lt_u32 s28, 27
s_cselect_b64 {M_GV}, -1, 0
v_cndmask_b32 v11, 0, v11, {M_GV}
s_waitcnt lgkmcnt(0)
{"s_mov_b32 s94, s24" if DIAG else ""}
{"s_mov_b32 s95, s25" if DIAG else ""}
{"s_add_u32 s24, s24, 128" if DIAG else ""}
{"s_addc_u32 s25, s25, 0" if DIAG else ""}
s_add_u32 s44, s26, s42
s_addc_u32 s45, s27, 0
s_cmp_lg_u32 s3, 0
s_cbranch_scc1 L_noclear
v_mov_b32 v56, -1
v_mov_b32 v57, -1
v_mov_b32 v58, -1
v_mov_b32 v59, -1
v_lshlrev_b32 v60, 4, v0
global_store_dwordx4 v60, v[56:59], s[44:45] sc1
global_store_dwordx4 v60, v[56:59], s[44:45] offset:1024 sc1
global_store_dwordx4 v60, v[56:59], s[44:45] offset:2048 sc1
global_store_dwordx4 v60, v[56:59], s[44:45] offset:3072 sc1
v_add_u32 v61, 4096, v60
v_cmp_gt_u32 vcc, {(REC-4096)//16}, v0
s_and_saveexec_b64 s[32:33], vcc
global_store_dwordx4 v61, v[56:59], s[44:45] sc1
s_mov_b64 exec, s[32:33]
""")
a.label("L_noclear")
a(f"""
global_load_dwordx4 v[48:51], v9, s[4:5]
global_load_dword v52, v9, s[4:5] offset:16
s_add_u32 s6, s6, s38
s_addc_u32 s7, s7, 0
s_add_u32 s8, s8, s38
s_addc_u32 s9, s9, 0
s_add_u32 s10, s10, s41
s_addc_u32 s11, s11, 0
s_cmp_ge_u32 s3, 4
s_cselect_b32 s56, s18, s16
s_cselect_b32 s57, s19, s17
s_add_u32 s56, s56, s59
s_addc_u32 s57, s57, 0
s_add_u32 s48, s26, s43
s_addc_u32 s49, s27, 0
""")
stream = [("w", j) for j in range(3)] + [("g", i) for i in range(3)]
stream += [("k", j) for j in range(16)] + [("v", j) for j in range(TPOS)] + [("t", j) for j in range(6)] + [("v", j) for j in range(TPOS, 16)]
issued = [0]
order = []
def issue_next():
    if issued[0] >= len(stream): return
    kind, j = stream[issued[0]]
    order.append((kind, j))
    issued[0] += 1
    if kind == "w":
        if j == 2: EX(M_L32)
        a(f"global_load_dwordx4 {v4(WB+4*j)}, v10, s[10:11] nt")
        if j == 2: EXR()
        else: a("s_add_u32 s10, s10, 32768\ns_addc_u32 s11, s11, 0")
    elif kind in "kv":
        lo = 6 if kind == "k" else 8
        B = KB if kind == "k" else VB
        a(f"global_load_dwordx4 {v4(B+4*j)}, v1, s[{lo}:{lo+1}] nt")
        if j < 15: a(f"s_add_u32 s{lo}, s{lo}, {65536 if IL else 8192}\ns_addc_u32 s{lo+1}, s{lo+1}, 0")
    elif kind == "g":
        if j == 2: EX(M_R4)
        a(f"global_load_dwordx4 {v4(GL+4*j)}, v11, s[56:57] nt")
        if j == 2: EXR()
        else: a(f"s_add_u32 s56, s56, {8*3456}\ns_addc_u32 s57, s57, 0")
    elif kind == "t":
        EX(M_C10)
        if j < 4:
            a(f"global_load_dwordx4 {v4(TL+4*j)}, v98, s[{12 if j < 2 else 14}:{13 if j < 2 else 15}] offset:{(j&1)*1280} nt")
        else:
            a(f"global_load_dwordx4 {v4(TL+4*j)}, v99, s[20:21] offset:{(j&1)*1280} nt")
        EXR()
def wait_for(item):
    i = order.index(item)
    a(f"s_waitcnt vmcnt({len(order) - 1 - i})")
def refill(done_item):
    i = order.index(done_item)
    while issued[0] < len(stream) and len(order) - 1 - i < D:
        if TILE_LATE and stream[issued[0]][0] == "t": break
        issue_next()

for _ in range(6): issue_next()
if B0: a("s_barrier")
for _ in range(KINIT): issue_next()
a(f"s_waitcnt vmcnt({6 + KINIT})")
stamp(1)
a(f"""
s_cmp_lg_u32 s3, 0
s_cbranch_scc1 L_nosig
v_mov_b32 v57, 1
s_lshl_b32 s38, s28, 2
v_mov_b32 v58, s38
v_cmp_eq_u32 vcc, 0, v0
s_and_saveexec_b64 s[32:33], vcc
global_atomic_add v58, v57, s[24:25] sc1
s_mov_b64 exec, s[32:33]
""")
a.label("L_nosig")
for k in range(5):
    a(f"v_lshlrev_b32 v{24+k}, 16, v{48+k}\nv_and_b32 v{32+k}, 0xffff0000, v{48+k}")
a("""
v_add_f32 v53, v24, v32
v_add_f32 v54, v25, v33
v_add_f32 v55, v26, v34
v_add_f32 v56, v27, v35
v_add_f32 v57, v28, v36
v_add_f32 v53, v53, v54
v_add_f32 v55, v55, v56
v_add_f32 v53, v53, v57
v_add_f32 v53, v53, v55
""")
row_allreduce("v_add_f32", "v53")
rows_allreduce("v_add_f32", "v53", "v54")
a("v_mul_f32 v53, 0x3acccccd, v53")
XS = [24, 25, 26, 27, 28, 32, 33, 34, 35, 36]
a("v_sub_f32 v55, v24, v53\nv_mul_f32 v54, v55, v55")
for r in XS[1:]:
    a(f"v_sub_f32 v55, v{r}, v53\nv_fmac_f32 v54, v55, v55")
row_allreduce("v_add_f32", "v54")
rows_allreduce("v_add_f32", "v54", "v55")
a("v_mul_f32 v54, 0x3acccccd, v54")
rbf("v53", "v53"); rbf("v54", "v54")
a("v_add_f32 v54, 0x3727c5ac, v54")
rbf("v54", "v54")
a("""
v_sqrt_f32 v55, v54
v_rcp_f32 v56, v55
v_fma_f32 v57, -v55, v55, v54
v_mul_f32 v56, 0.5, v56
v_fma_f32 v55, v57, v56, v55
""")
rbf("v55", "v55")
a("v_rcp_f32 v56, v55")
for r in XS: a(f"v_sub_f32 v{r}, v{r}, v53")
for r in XS: rbf(v(r), v(r))
for r in XS:
    a(f"v_mul_f32 v57, v{r}, v56\nv_fma_f32 v58, -v57, v55, v{r}\nv_fma_f32 v{r}, v58, v56, v57")
for k in range(5): a(f"v_cvt_pk_bf16_f32 v{48+k}, v{24+k}, v{32+k}")
for k in range(5): a(f"ds_write_b32 v9, v{48+k} offset:{XN+4*k}")
a(f"""
s_mul_i32 s38, s3, 20
s_mul_i32 s39, s29, 160
s_add_u32 s38, s38, s39
v_lshlrev_b32 v5, 3, v3
v_lshl_add_u32 v5, v15, 1, v5
v_add_u32 v5, s38, v5
ds_read_u16 v{XA_l}, v5 offset:{XN}
s_lshl_b32 s38, s58, 1
v_lshrrev_b32 v6, 3, v0
v_lshl_add_u32 v6, v6, 1, s38
ds_read_u16 v{XG}, v6 offset:{XN}
ds_read_u16 v{XG+2}, v6 offset:{XN+16}
ds_read_u16 v{XG+4}, v6 offset:{XN+32}
""")
for i in range(16): a(f"v_mov_b32 v{ACC+i}, 0")
a(f"""
s_waitcnt lgkmcnt(0)
v_lshlrev_b32 v{XA_h}, 16, v{XA_l}
v_lshlrev_b32 v{XG+1}, 16, v{XG}
v_lshlrev_b32 v{XG+3}, 16, v{XG+2}
v_lshlrev_b32 v{XG+5}, 16, v{XG+4}
""")
for j in range(3):
    wait_for(("w", j))
    if j == 2: EX(M_L32)
    for i in range(4):
        a(f"v_dot2c_f32_bf16_dpp v{ACC+2*i}, v{XA_l}, v{WB+4*j+i} row_newbcast:{j} {DPPM}")
        a(f"v_dot2c_f32_bf16_dpp v{ACC+2*i+1}, v{XA_h}, v{WB+4*j+i} row_newbcast:{j} {DPPM}")
    if j == 2: EXR()
    refill(("w", j))
reduce8_g(ACC)
a(f"""
v_lshlrev_b32 v4, 5, v3
v_lshl_add_u32 v4, v15, 3, v4
s_mul_i32 s38, s3, {R1S}
v_add_u32 v5, s38, v4
ds_write_b64 v5, v[{ACC}:{ACC+1}] offset:{RED1}
""")
for j in range(3):
    wait_for(("g", j))
    if j == 2: EX(M_R4)
    for i in range(4):
        a(f"v_dot2c_f32_bf16 v{AC2+2*i}, v{XG+2*j}, v{GL+4*j+i}")
        a(f"v_dot2c_f32_bf16 v{AC2+2*i+1}, v{XG+2*j+1}, v{GL+4*j+i}")
    if j == 2: EXR()
    refill(("g", j))
reduce8_g(AC2)
a(f"""
v_add_f32_dpp v{AC2}, v{AC2}, v{AC2} row_ror:8 row_mask:0xf bank_mask:0x3
v_add_f32_dpp v{AC2}, v{AC2+1}, v{AC2+1} row_ror:8 row_mask:0xf bank_mask:0xc
v_and_b32 v5, 7, v0
v_lshlrev_b32 v5, 5, v5
v_lshrrev_b32 v6, 5, v0
v_lshl_add_u32 v5, v6, 4, v5
v_bfe_u32 v6, v0, 4, 1
v_lshl_add_u32 v5, v6, 3, v5
v_bfe_u32 v6, v0, 3, 1
v_lshl_add_u32 v5, v6, 2, v5
s_mul_i32 s38, s3, {R1S}
v_add_u32 v5, s38, v5
ds_write_b32 v5, v{AC2} offset:{RED1+512}
s_waitcnt lgkmcnt(0)
s_barrier
v_and_b32 v6, 31, v0
v_lshrrev_b32 v7, 5, v0
s_cmp_ge_u32 s3, 4
s_cbranch_scc1 L_glupub
v_mul_u32_u24 v7, {4*R1S}, v7
v_lshl_add_u32 v7, v6, 2, v7
s_lshl_b32 s38, s3, 7
v_add_u32 v7, s38, v7
ds_read_b32 v48, v7 offset:{RED1}
ds_read_b32 v49, v7 offset:{RED1+R1S}
ds_read_b32 v50, v7 offset:{RED1+2*R1S}
ds_read_b32 v51, v7 offset:{RED1+3*R1S}
s_add_u32 s38, s38, {R_Q}
v_lshl_add_u32 v6, v6, 2, s38
s_waitcnt lgkmcnt(0)
v_add_f32 v48, v48, v49
v_add_f32 v50, v50, v51
v_add_f32 v48, v48, v50
s_branch L_pub0
""")
a.label("L_glupub")
a(f"""
v_mul_u32_u24 v7, {2*R1S}, v7
v_lshl_add_u32 v7, v6, 2, v7
s_and_b32 s38, s3, 1
s_lshl_b32 s38, s38, 7
s_bfe_u32 s39, s3, 0x10001
s_mul_i32 s40, s39, {4*R1S}
s_add_u32 s40, s40, s38
v_add_u32 v7, s40, v7
ds_read_b32 v48, v7 offset:{RED1+512}
ds_read_b32 v49, v7 offset:{RED1+512+R1S}
s_lshl_b32 s39, s39, 8
s_add_u32 s39, s39, s38
s_add_u32 s39, s39, {R_GLU}
v_lshl_add_u32 v6, v6, 2, s39
s_waitcnt lgkmcnt(0)
v_add_f32 v48, v48, v49
""")
a.label("L_pub0")
half_allreduce("v_add_f32", "v48", "v49")
a(f"v_min_u32 v48, 0xfffffffe, v48")
EX(M_L32)
a("global_store_dword v6, v48, s[44:45] sc1")
if 2 <= DUAL < 4: a("global_store_dword v6, v48, s[44:45]")
if DUAL >= 4: a(f"global_store_dword v6, v48, s[44:45] offset:{FOFF}")
EXR()
order.append(("pub", 0))
stamp(2)
a(f"""
s_lshl_b32 s38, s3, 4
v_lshl_add_u32 v98, v15, 1, s38
s_movk_i32 s39, 1280
v_mul_lo_u32 v98, v98, s39
v_lshl_add_u32 v98, v3, 4, v98
s_lshl_b32 s38, s3, 3
v_lshl_add_u32 v2, v15, 1, s38                ; 8w + 2g
v_mul_lo_u32 v99, v2, s39
v_lshl_add_u32 v99, v3, 4, v99
v_cndmask_b32 v99, 0, v99, {M_GV}
s_mul_i32 s38, s28, {128*1280}
s_mul_i32 s40, s29, 160
s_add_u32 s38, s38, s40
s_add_u32 s12, s12, s38
s_addc_u32 s13, s13, 0
s_mul_i32 s38, s46, {64*1280}
s_add_u32 s38, s38, s40
s_add_u32 s20, s20, s38
s_addc_u32 s21, s21, 0
s_add_u32 s14, s12, {8*1280}
s_addc_u32 s15, s13, 0
v_lshrrev_b32 v92, 5, v0
v_mul_u32_u24 v92, {32*REC}, v92
v_and_b32 v8, 31, v0
v_lshl_add_u32 v92, v8, 4, v92
v_add_u32 v93, {64*REC}, v92
v_add_u32 v94, {128*REC}, v92
v_add_u32 v95, {192*REC}, v92
v_lshlrev_b32 v8, 2, v8
s_cmp_eq_u32 s3, 0
s_cselect_b32 s58, {2 if NOEX else 0}, 2
s_add_u32 s42, s48, {FOFF}
s_addc_u32 s43, s49, 0
""")
def cnt_issue(): a("global_load_dword v96, v8, s[24:25] sc1")
def data_issue(fast=False):
    b = "s[42:43]" if fast else "s[48:49]"
    for k in range(4): a(f"global_load_dwordx4 {v4(PQ+4*k)}, v{92+k}, {b} offset:{R_Q} sc1")
    for k in range(4): a(f"global_load_dwordx4 {v4(PG+4*k)}, v{92+k}, {b} offset:{R_GLU} sc1")
def checkpoint(n, first=False, fast=False):
    a(f"s_cmp_eq_u32 s58, 2\ns_cbranch_scc1 L_ck{n}_skip")
    if first:
        cnt_issue()
    else:
        a(f"""
s_cmp_eq_u32 s58, 1
s_cbranch_scc1 L_ck{n}_data
v_readlane_b32 s38, v96, s28
s_cmp_ge_u32 s38, 8
s_cbranch_scc1 L_ck{n}_cntok
""")
        cnt_issue()
        a(f"s_branch L_ck{n}_skip")
        a.label(f"L_ck{n}_data")
        regs = list(range(PQ, PQ+16)) + list(range(PG, PG+16))
        a(f"v_max3_u32 v100, v{regs[0]}, v{regs[1]}, v{regs[2]}")
        a(f"v_max3_u32 v101, v{regs[3]}, v{regs[4]}, v{regs[5]}")
        rest = regs[6:]
        for i in range(0, len(rest), 2):
            a(f"v_max3_u32 v{100+(i//2)%2}, v{100+(i//2)%2}, v{rest[i]}, v{rest[i+1]}")
        a(f"""
v_max_u32 v100, v100, v101
v_cmp_eq_u32 vcc, -1, v100
s_cbranch_vccnz L_ck{n}_cntok
s_mov_b32 s58, 2
s_branch L_ck{n}_skip
""")
        a.label(f"L_ck{n}_cntok")
        a("s_mov_b32 s58, 1")
        data_issue(fast and DUAL >= 4)
    a.label(f"L_ck{n}_skip")
kv_items = [("k", j) for j in range(16)] + [("v", j) for j in range(B2_AT + 1)]
nck = 0
started = False
mark = None
for it in kv_items:
    if order.index(it) < 6 + KINIT - 100: continue
    wait_for(it)
    if it[0] == "k" and it[1] % 4 == 3 and it[1] > 8: stamp(8 + it[1] // 4)
    if not started and it[1] >= CNT_AT:
        checkpoint(nck, first=True); nck += 1; started = True; mark = len(order)
    elif started and order.index(it) >= mark:
        checkpoint(nck, fast=True); nck += 1
        mark = len(order)
    refill(it)
for _ in range(TOP1): issue_next()
a(f"s_cmp_lg_u32 s3, 0\ns_cbranch_scc1 L_b2")
a(f"s_cmp_eq_u32 s58, 2\ns_cbranch_scc1 L_pqok\ns_waitcnt vmcnt({len(order) - mark})")
checkpoint(nck); nck += 1
a("s_mov_b32 s47, 0")
a.label("L_pqloop")
a(f"""
s_cmp_eq_u32 s58, 2
s_cbranch_scc1 L_pqok
s_add_u32 s47, s47, 1
s_cmp_ge_u32 s47, {SPIN_MAX}
s_cbranch_scc1 L_pqok
s_waitcnt vmcnt(0)
""")
checkpoint(nck, fast=True)
a("s_waitcnt vmcnt(0)")
checkpoint(nck + 1)
a("s_branch L_pqloop")
a.label("L_pqok")
for i in range(4):
    a(f"v_add_f32 v{PQ+i}, v{PQ+i}, v{PQ+4+i}\nv_add_f32 v{PQ+8+i}, v{PQ+8+i}, v{PQ+12+i}")
    a(f"v_add_f32 v{PG+i}, v{PG+i}, v{PG+4+i}\nv_add_f32 v{PG+8+i}, v{PG+8+i}, v{PG+12+i}")
for i in range(4):
    a(f"v_add_f32 v{PQ+i}, v{PQ+i}, v{PQ+8+i}\nv_add_f32 v{PG+i}, v{PG+i}, v{PG+8+i}")
for i in range(4):
    half_allreduce("v_add_f32", v(PQ+i), v(PQ+4+i))
    half_allreduce("v_add_f32", v(PG+i), v(PG+4+i))
a(f"""
v_cvt_pk_bf16_f32 v{PQ+4}, v{PQ}, v{PQ+1}
v_cvt_pk_bf16_f32 v{PQ+5}, v{PQ+2}, v{PQ+3}
v_lshlrev_b32 v5, 1, v8                       ; (l&31)*8
ds_write_b64 v5, v[{PQ+4}:{PQ+5}] offset:{QF}
""")
for i in range(4):
    rbf(v(PG+i), v(PG+i))
for i in range(4):
    a(f"v_mov_b32 v{PG+4+i}, v{PG+i}\nv_permlane16_swap_b32 v{PG+i}, v{PG+4+i}")
for i in range(4):
    g_, u_, t0, t1 = PG+i, PG+4+i, PG+8+i, PG+12+i
    a(f"""
v_mul_f32 v{g_}, {LOG2E ^ 0x80000000:#x}, v{g_}
v_min_f32 v{g_}, 0x42fc0000, v{g_}
v_exp_f32 v{g_}, v{g_}
v_add_f32 v{g_}, 1.0, v{g_}
v_rcp_f32 v{t0}, v{g_}
v_fma_f32 v{t1}, -v{t0}, v{g_}, 1.0
v_fma_f32 v{t0}, v{t1}, v{t0}, v{t0}
""")
    rbf(v(t0), v(t0))
    a(f"v_mul_f32 v{t0}, v{t0}, v{u_}\nv_cndmask_b32 v{t0}, 0, v{t0}, {M_GV}")
a(f"""
v_cvt_pk_bf16_f32 v{PG}, v{PG+8}, v{PG+9}
v_cvt_pk_bf16_f32 v{PG+1}, v{PG+10}, v{PG+11}
v_lshlrev_b32 v5, 3, v3
ds_write_b64 v5, v[{PG}:{PG+1}] offset:{HF}
s_waitcnt lgkmcnt(0)
""")
a.label("L_b2")
a(f"""
s_barrier
v_lshlrev_b32 v6, 4, v3
ds_read_b128 {v4(QR)}, v6 offset:{QF}
""")
for j in range(16): a(f"v_mov_b32 v{S+j}, 0")
a("s_waitcnt lgkmcnt(0)")
for i in range(4):
    for j in range(16):
        a(f"v_dot2c_f32_bf16 v{S+j}, v{KB+4*j+i}, v{QR+i}")
for i in range(8):
    a(f"v_add_f32_dpp v{S+i}, v{S+i}, v{S+i} row_ror:8 row_mask:0xf bank_mask:0x3")
    a(f"v_add_f32_dpp v{S+i}, v{S+i+8}, v{S+i+8} row_ror:8 row_mask:0xf bank_mask:0xc")
for i in range(4):
    a(f"v_add_f32_dpp v{S+i}, v{S+i}, v{S+i} row_half_mirror row_mask:0xf bank_mask:0x5")
    a(f"v_add_f32_dpp v{S+i}, v{S+i+4}, v{S+i+4} row_half_mirror row_mask:0xf bank_mask:0xa")
a(f"""
v_cndmask_b32 v{S+4}, v{S}, v{S+2}, {M_B1}
v_cndmask_b32 v{S+5}, v{S+2}, v{S}, {M_B1}
v_cndmask_b32 v{S+6}, v{S+1}, v{S+3}, {M_B1}
v_cndmask_b32 v{S+7}, v{S+3}, v{S+1}, {M_B1}
v_add_f32_dpp v{S}, v{S+5}, v{S+4} quad_perm:[2,3,0,1] {DPPM}
v_add_f32_dpp v{S+1}, v{S+7}, v{S+6} quad_perm:[2,3,0,1] {DPPM}
v_cndmask_b32 v{S+2}, v{S}, v{S+1}, {M_B0}
v_cndmask_b32 v{S+3}, v{S+1}, v{S}, {M_B0}
v_add_f32_dpp v{S}, v{S+3}, v{S+2} quad_perm:[1,0,3,2] {DPPM}
""")
for _ in range(TOP2): issue_next()
rbf(v(S), v(S))
a(f"v_mul_f32 v{S}, {SCALE:#x}, v{S}")
rbf(v(S), v(S))
a(f"v_mov_b32 v{S+6}, v{S}")
row_allreduce("v_max_f32", v(S+6))
rows_allreduce("v_max_f32", v(S+6), v(S+2))
a(f"""
v_sub_f32 v{S+7}, v{S}, v{S+6}
v_mul_f32 v{S+7}, {LOG2E:#x}, v{S+7}
v_exp_f32 v{S+7}, v{S+7}
""")
row_allreduce("v_add_f32", v(S+7))
rows_allreduce("v_add_f32", v(S+7), v(S+3))
a(f"""
s_lshl_b32 s38, s3, 3
v_mov_b32 v6, s38
ds_write_b64 v6, v[{S+6}:{S+7}] offset:{MAXA}
s_waitcnt lgkmcnt(0)
s_barrier
v_and_b32 v7, 7, v0
v_lshlrev_b32 v7, 3, v7
ds_read_b64 v[{S+4}:{S+5}], v7 offset:{MAXA}
v_lshlrev_b32 v7, 1, v2
ds_read_b32 v18, v7 offset:{HF}
s_waitcnt lgkmcnt(0)
v_mov_b32 v{S+1}, v{S+4}
""")
row_allreduce("v_max_f32", v(S+1), (4, 2, 1))
PL, PH = S + 2, S + 3
LW = 22
a(f"""
v_sub_f32 v{S+4}, v{S+4}, v{S+1}
v_mul_f32 v{S+4}, {LOG2E:#x}, v{S+4}
v_exp_f32 v{S+4}, v{S+4}
v_min_u32 v{MX}, 0xfffffffe, v{S+1}
v_sub_f32 v{S}, v{S}, v{S+1}
v_mul_f32 v{S}, {LOG2E:#x}, v{S}
v_exp_f32 v{S}, v{S}
v_mul_f32 v{LW}, v{S+5}, v{S+4}
v_cvt_pk_bf16_f32 v{PL}, v{S}, 0
v_cvt_pk_bf16_f32 v{PH}, 0, v{S}
""")
row_allreduce("v_add_f32", v(LW), (4, 2, 1))
a(f"""
v_min_u32 v{LW}, 0xfffffffe, v{LW}
s_lshl_b32 s38, s3, 9
v_add_u32 v10, s38, v4
v_and_b32 v5, 7, v0
v_lshrrev_b32 v6, 3, v0
v_lshlrev_b32 v6, 9, v6
v_lshl_add_u32 v6, v5, 3, v6
s_lshl_b32 s38, s3, 6
v_add_u32 v11, s38, v6
s_lshl_b32 s38, s3, 7
v_lshl_add_u32 v12, v5, 4, s38
v_lshrrev_b32 v6, 1, v3
v_mul_u32_u24 v6, {32*REC}, v6
v_and_b32 v7, 1, v3
v_lshl_add_u32 v7, v7, 2, v15
v_lshl_add_u32 v9, v7, 4, v6
v_add_u32 v9, s38, v9
v_cmp_gt_u32 s[56:57], 8, v0
v_lshrrev_b32 v6, 1, v15
v_mul_u32_u24 v6, 320, v6
v_lshl_add_u32 v6, v3, 5, v6
v_and_b32 v7, 1, v15
v_lshl_add_u32 v6, v7, 4, v6
s_mul_i32 s39, s3, 640
v_add_u32 v14, s39, v6
v_and_b32 v6, 31, v0
v_lshrrev_b32 v7, 5, v0
v_mul_u32_u24 v7, {4*640}, v7
v_lshl_add_u32 v7, v6, 2, v7
v_add_u32 v16, s38, v7
v_lshl_add_u32 v17, v6, 2, s38
v_and_b32 v19, 0xffff, v18
v_lshlrev_b32 v20, 16, v18
v_lshrrev_b32 v21, 16, v18
v_and_b32 v18, 0xffff0000, v18
""")
stamp(3)
for i in range(8): a(f"v_mov_b32 v{ACC+i}, 0")
B2_ITEM = ("v", B2_AT) if B2_AT >= 0 else ("k", 15)
pos_b2 = stream.index(B2_ITEM)
last_v = stream.index(("v", 15))
for pi, it in enumerate(stream):
    if it[0] not in "vt" or pi > last_v: continue
    if pi > pos_b2:
        wait_for(it)
        refill(it)
    elif pi == stream.index(("v", 0)):
        refill(B2_ITEM)
    if pi == last_v:
        while issued[0] < len(stream): issue_next()
    if it[0] == "v":
        j = it[1]
        if j % 4 == 3: stamp(12 + j // 4)
        for i in range(4):
            a(f"v_dot2c_f32_bf16_dpp v{ACC+2*i}, v{PL}, v{VB+4*j+i} row_newbcast:{j} {DPPM}")
            a(f"v_dot2c_f32_bf16_dpp v{ACC+2*i+1}, v{PH}, v{VB+4*j+i} row_newbcast:{j} {DPPM}")
reduce8_g(ACC)
a(f"""
ds_write_b64 v10, v[{ACC}:{ACC+1}] offset:{RED2}
v_mov_b32 v50, v{MX}
v_mov_b32 v51, v{LW}
s_waitcnt lgkmcnt(0)
s_barrier
""")
stamp(4)
if DIAG: a("s_memrealtime s[96:97]")
a(f"""
ds_read_b64 v[48:49], v11 offset:{RED2}
s_waitcnt lgkmcnt(0)
v_add_f32_dpp v48, v48, v48 row_ror:8 {DPPM}
v_add_f32_dpp v49, v49, v49 row_ror:8 {DPPM}
v_mov_b32 v52, v48
v_mov_b32 v53, v49
v_permlane32_swap_b32 v48, v52
v_permlane32_swap_b32 v49, v53
v_add_f32 v48, v48, v52
v_add_f32 v49, v49, v53
v_mov_b32 v52, v48
v_mov_b32 v53, v49
v_permlane16_swap_b32 v48, v52
v_permlane16_swap_b32 v49, v53
v_add_f32 v48, v48, v52
v_add_f32 v49, v49, v53
v_min_u32 v48, 0xfffffffe, v48
v_min_u32 v49, 0xfffffffe, v49
s_mov_b64 s[32:33], exec
s_mov_b64 exec, s[56:57]
global_store_dwordx4 v12, v[48:51], s[44:45] offset:{R_O2}
global_store_dwordx4 v12, v[48:51], s[44:45] offset:{R_O} sc1
s_mov_b64 exec, s[32:33]
""")
def pissue(k):
    a(f"global_load_dwordx4 v[{100+4*k}:{103+4*k}], v9, s[48:49] offset:{R_O2 if DUAL >= 3 else R_O} {FASTF if DUAL >= 3 else 'sc1'}")
assert NPOLL <= 3
pissue(0)
stamp(8)
a(f"""
s_cmp_lg_u32 s28, s29
s_cbranch_scc1 L_nofc
s_cmp_lg_u32 s3, 7
s_cbranch_scc1 L_nofc
s_mov_b32 s47, 0
""")
a.label("L_poll_c")
a(f"""
global_load_dword v48, v8, s[24:25] sc1
s_waitcnt vmcnt(0)
v_cmp_gt_u32 vcc, 8, v48
s_cbranch_vccz L_nofc
s_add_u32 s47, s47, 1
s_cmp_lt_u32 s47, {SPIN_MAX}
s_cbranch_scc1 L_poll_c
""")
a.label("L_nofc")
for i in range(16): a(f"v_mov_b32 v{ACC+i}, 0")
a(f"""
s_waitcnt vmcnt(3)
""")
for i in range(2):
    for k in range(4):
        a(f"v_cndmask_b32 v{TL+16+4*i+k}, 0, v{TL+16+4*i+k}, {M_GV}")
for i in range(2):
    for k in range(4):
        a(f"v_dot2c_f32_bf16 v{AC2+2*k}, v{(19, 21)[i]}, v{TL+16+4*i+k}")
        a(f"v_dot2c_f32_bf16 v{AC2+2*k+1}, v{(20, 18)[i]}, v{TL+16+4*i+k}")
a("s_mov_b32 s47, 0")
for k in range(1, NPOLL - 1):
    pissue(k)
    a(f"s_sleep {POLLGAP}")
a.label("L_poll_o")
if POLLNT:
    assert NPOLL == 1
    for t in range(POLLNT + 1):
        a(f"""
s_waitcnt vmcnt(0)
v_max3_u32 v52, v100, v101, v102
v_max_u32 v52, v52, v103
v_cmp_eq_u32 vcc, -1, v52
s_cbranch_vccz L_poll_o_ok0
global_load_dwordx4 v[100:103], v9, s[48:49] offset:{(R_O2 if DUAL >= 3 else R_O) if t < POLLNT else R_O} {FASTF if t < POLLNT else "sc1"}
""")
else:
  for k in range(NPOLL):
    if NPOLL > 1: pissue((k + NPOLL - 1) % NPOLL)
    b = 100 + 4*k
    a(f"""
s_waitcnt vmcnt({NPOLL-1})
v_max3_u32 v52, v{b}, v{b+1}, v{b+2}
v_max_u32 v52, v52, v{b+3}
v_cmp_eq_u32 vcc, -1, v52
s_cbranch_vccz L_poll_o_ok{k}
""")
    if NPOLL == 1:
        if PSLEEP: a(f"s_sleep {PSLEEP}")
        pissue(0)
a(f"""
s_add_u32 s47, s47, 1
s_cmp_lt_u32 s47, {SPIN_MAX}
s_cbranch_scc1 L_poll_o
""")
for k in range(NPOLL):
    a.label(f"L_poll_o_ok{k}")
    for i in range(4): a(f"v_mov_b32 v{48+i}, v{100+4*k+i}")
    if k < NPOLL - 1: a("s_branch L_poll_o_ok")
a.label("L_poll_o_ok")
stamp(5)
if STAMPS: a("s_mov_b32 s78, s47\ns_mov_b32 s79, 0")
a("v_mov_b32 v52, v50")
row_allreduce("v_max_f32", "v52", (8, 4, 2))
a(f"""
v_sub_f32 v50, v50, v52
v_mul_f32 v50, {LOG2E:#x}, v50
v_exp_f32 v50, v50
v_mul_f32 v51, v51, v50
v_mul_f32 v48, v48, v50
v_mul_f32 v49, v49, v50
""")
for r in (8, 4, 2):
    for x in (51, 48, 49):
        a(f"v_add_f32_dpp v{x}, v{x}, v{x} row_ror:{r} {DPPM}")
a(f"""
v_rcp_f32 v52, v51
v_mul_f32 v53, v48, v52
v_mul_f32 v54, v49, v52
v_fma_f32 v55, -v53, v51, v48
v_fma_f32 v56, -v54, v51, v49
v_fma_f32 v53, v55, v52, v53
v_fma_f32 v54, v56, v52, v54
v_cvt_pk_bf16_f32 v55, v53, 0
v_cvt_pk_bf16_f32 v56, 0, v53
v_cvt_pk_bf16_f32 v57, v54, 0
v_cvt_pk_bf16_f32 v58, 0, v54
""")
for j in range(4):
    lo = 55 + 2*(j & 1)
    for i in range(4):
        a(f"v_dot2c_f32_bf16_dpp v{ACC+2*i}, v{lo}, v{TL+4*j+i} row_newbcast:{j>>1} {DPPM}")
        a(f"v_dot2c_f32_bf16_dpp v{ACC+2*i+1}, v{lo+1}, v{TL+4*j+i} row_newbcast:{j>>1} {DPPM}")
for i in range(8): a(f"v_permlane32_swap_b32 v{ACC+i}, v{AC2+i}")
for i in range(8): a(f"v_add_f32 v{ACC+i}, v{ACC+i}, v{AC2+i}")
for i in range(4): a(f"v_permlane16_swap_b32 v{ACC+i}, v{ACC+i+4}")
for i in range(4): a(f"v_add_f32 v{ACC+i}, v{ACC+i}, v{ACC+i+4}")
EX(M_C10)
a(f"ds_write_b128 v14, v[{ACC}:{ACC+3}] offset:{RED3}")
EXR()
a(f"""
s_waitcnt lgkmcnt(0)
s_barrier
s_cmp_gt_u32 s3, 4
s_cbranch_scc1 L_pub2done
ds_read_b32 v48, v16 offset:{RED3}
ds_read_b32 v49, v16 offset:{RED3+640}
ds_read_b32 v50, v16 offset:{RED3+1280}
ds_read_b32 v51, v16 offset:{RED3+1920}
s_waitcnt lgkmcnt(0)
v_add_f32 v48, v48, v49
v_add_f32 v50, v50, v51
v_add_f32 v48, v48, v50
""")
half_allreduce("v_add_f32", "v48", "v49")
a("v_min_u32 v48, 0xfffffffe, v48")
EX(M_L32)
a(f"global_store_dword v17, v48, s[44:45] offset:{R_Y} sc1")
EXR()
a.label("L_pub2done")
stamp(6)
a(f"""
s_cmp_lg_u32 s28, s29
s_cbranch_scc1 L_fin_end
s_mul_i32 s38, s29, {32*REC}
s_mul_i32 s39, s3, {4*REC}
s_add_u32 s38, s38, s39
s_add_u32 s38, s38, {R_Y}
s_add_u32 s40, s26, s38
s_addc_u32 s41, s27, 0
s_add_u32 s42, s40, {2*REC}
s_addc_u32 s43, s41, 0
v_lshlrev_b32 v6, 4, v0
v_add_u32 v10, {REC}, v6
s_mul_i32 s38, s29, 160
s_lshl_b32 s39, s3, 5
s_add_u32 s38, s38, s39
v_lshl_add_u32 v8, v3, 1, s38
v_min_u32 v8, 1278, v8
global_load_ushort v9, v8, s[4:5]
v_cmp_gt_u32 vcc, 40, v0
s_and_saveexec_b64 s[32:33], vcc
s_mov_b32 s47, 0
""")
a.label("L_poll_y")
a(f"""
global_load_dwordx4 v[24:27], v6, s[40:41] sc1
global_load_dwordx4 v[28:31], v10, s[40:41] sc1
global_load_dwordx4 v[32:35], v6, s[42:43] sc1
global_load_dwordx4 v[36:39], v10, s[42:43] sc1
s_waitcnt vmcnt(0)
v_max3_u32 v48, v24, v25, v26
v_max3_u32 v49, v27, v28, v29
v_max3_u32 v50, v30, v31, v32
v_max3_u32 v51, v33, v34, v35
v_max3_u32 v52, v36, v37, v38
v_max3_u32 v48, v48, v49, v39
v_max3_u32 v50, v50, v51, v52
v_max_u32 v48, v48, v50
v_cmp_eq_u32 vcc, -1, v48
s_cbranch_vccz L_poll_y_ok
s_add_u32 s47, s47, 1
s_cmp_lt_u32 s47, {SPIN_MAX}
s_cbranch_scc1 L_poll_y
""")
a.label("L_poll_y_ok")
for i in range(4):
    a(f"v_add_f32 v{24+i}, v{24+i}, v{28+i}\nv_add_f32 v{32+i}, v{32+i}, v{36+i}")
for i in range(4):
    a(f"v_add_f32 v{24+i}, v{24+i}, v{32+i}")
a(f"""
s_mul_i32 s38, s3, 640
v_add_u32 v7, s38, v6
ds_write_b128 v7, v[24:27] offset:{RED4}
s_mov_b64 exec, s[32:33]
s_waitcnt lgkmcnt(0)
s_barrier
s_cmp_gt_u32 s3, 4
s_cbranch_scc1 L_fin_end
v_lshrrev_b32 v6, 1, v15
v_mul_u32_u24 v6, 320, v6
v_and_b32 v7, 1, v15
v_mul_u32_u24 v7, {4*640}, v7
v_add_u32 v6, v6, v7
v_lshl_add_u32 v6, v3, 2, v6
s_lshl_b32 s38, s3, 6
v_add_u32 v6, s38, v6
ds_read_b32 v48, v6 offset:{RED4}
ds_read_b32 v49, v6 offset:{RED4+640}
ds_read_b32 v50, v6 offset:{RED4+1280}
ds_read_b32 v51, v6 offset:{RED4+1920}
s_waitcnt lgkmcnt(0)
v_add_f32 v48, v48, v49
v_add_f32 v50, v50, v51
v_add_f32 v48, v48, v50
v_mov_b32 v49, v48
v_permlane16_swap_b32 v48, v49
v_add_f32 v48, v48, v49
""")
rbf("v48", "v48")
a(f"""
v_mov_b32 v49, v48
v_permlane32_swap_b32 v48, v49
v_lshlrev_b32 v9, 16, v9
v_add_f32 v48, v9, v48
""")
rbf("v48", "v48")
a(f"""
v_add_f32 v48, v48, v49
v_cvt_pk_bf16_f32 v48, v48, 0
v_cmp_gt_u32 vcc, 16, v0
s_and_saveexec_b64 s[32:33], vcc
global_store_short v8, v48, s[22:23]
s_mov_b64 exec, s[32:33]
""")
a.label("L_fin_end")
stamp(7)
if DIAG:
    a("""
s_memrealtime s[92:93]
s_waitcnt lgkmcnt(0)
s_cmp_lg_u32 s3, 0
s_cbranch_scc1 L_end
v_cmp_eq_u32 vcc, 0, v0
s_and_saveexec_b64 s[32:33], vcc
s_not_b32 s90, s90
v_mov_b32 v1, 0
v_mov_b32 v2, s90
v_mov_b32 v3, s92
v_mov_b32 v4, s96
global_atomic_umax v1, v2, s[94:95] sc1
global_atomic_umax v1, v3, s[94:95] offset:4 sc1
global_atomic_umax v1, v4, s[94:95] offset:8 sc1
""")
if STAMPS:
    a(f"""
s_waitcnt lgkmcnt(0)
s_cmp_lg_u32 s3, {STAMPWAVE}
s_cbranch_scc1 L_end
v_cmp_eq_u32 vcc, 0, v0
s_and_saveexec_b64 s[32:33], vcc
s_mul_i32 s38, s2, {NST*8}
s_add_u32 s38, s38, {STAMP_OFF}
v_mov_b32 v1, s38
""")
    for i in range(NST):
        a(f"v_mov_b32 v2, s{60+2*i}\nv_mov_b32 v3, s{61+2*i}\nglobal_store_dwordx2 v1, v[2:3], s[26:27] offset:{8*i}")
a.label("L_end")
a("s_endpgm")

hdr = open("parallel_sum__sliding_block_cached__glu_gated_glu__decode.s.ref").read().split("; Override")[0]
out = hdr + f"""; Override launch geometry by editing the next line (default: block=256,
; grid=ceil(out_elems/256), lds=0). Harness parses it; keep it on one line.
; @launch grid=(256,1,1) block=(512,1,1) lds={LDS_BYTES}
.amdgcn_target "amdgcn-amd-amdhsa--gfx950"
.text
.globl {NAME}
.p2align 8
.type {NAME},@function
{NAME}:
""" + a.render() + f""".section .rodata,"a"
.p2align 6
.amdhsa_kernel {NAME}
  .amdhsa_next_free_vgpr {NVGPR}
  .amdhsa_next_free_sgpr 102
  .amdhsa_accum_offset {NVGPR}
  .amdhsa_group_segment_fixed_size 0
  .amdhsa_kernarg_size 96
  .amdhsa_user_sgpr_count 2
  .amdhsa_user_sgpr_kernarg_segment_ptr 1
  .amdhsa_system_sgpr_workgroup_id_x 1
.end_amdhsa_kernel
"""
open(sys.argv[1], "w").write(out)
```

```python
import sys, os
from asmlib import Asm
NAME = "parallel_sum__sliding_block_cached__glu_gated_glu__decode_kernel"
E = lambda k, d: int(os.environ.get(k, str(d)))
STAMPS = E("STAMPS", 0); STAMPWAVE = E("STAMPWAVE", 0)
D = E("DEPTH", 6); KINIT = E("KINIT", 0); B2_AT = E("B2_AT", 3); TILE_LATE = E("TILE_LATE", 0)
FASTF = os.environ.get("FASTF", "sc1"); ECNT = E("ECNT", 1); TOP1 = E("TOP1", 0); TOP2 = E("TOP2", 4); DIAG = E("DIAG", 0); TPOS = E("TPOS", 16); POLLNT = E("POLLNT", 3); DUAL = E("DUAL", 4); PSLEEP = E("PSLEEP", 0); IL = E("IL", 1); NPOLLY = E("NPOLLY", 1); B0 = E("B0", 0); NPOLL = E("NPOLL", 1); POLLGAP = E("POLLGAP", 2); NOEX = E("NOEX", 0); CNT_AT = E("CNT_AT", 0)
NST = 16
XN = 0
RED1 = 1280; R1S = 784
QF = RED1 + 8 * R1S
HF = QF + 256
OF = HF + 128
MAXA = OF + 256
LRED = MAXA + 64
RED2 = LRED + 64
RED3 = RED2 + 4096
RED4 = RED3 + 5120
LDS_BYTES = RED4 + 5120
assert QF % 16 == 0 and RED3 % 16 == 0 and RED4 % 16 == 0
REC = 4736
R_O = 0; R_ML = 512; R_GLU = 1024; R_Q = 1536; R_Y = 2048; R_O2 = 2688; FOFF = 2688
STAMP_OFF = 2 << 20
LOG2E = 0x3fb8aa3b
SCALE = 0x3db504f3
SPIN_MAX = 200000

a = Asm()
def stamp(i):
    if STAMPS: a(f"s_memrealtime s[{60+2*i}:{61+2*i}]")
def v(n): return f"v{n}"
def v4(n): return f"v[{n}:{n+3}]"
DPPM = "row_mask:0xf bank_mask:0xf"
def half_allreduce(op, x, t):
    a(f"v_mov_b32 {t}, {x}\nv_permlane32_swap_b32 {x}, {t}\n{op} {x}, {x}, {t}")
def rows_allreduce(op, x, t):
    half_allreduce(op, x, t)
    a(f"v_mov_b32 {t}, {x}\nv_permlane16_swap_b32 {x}, {t}\n{op} {x}, {x}, {t}")
def row_allreduce(op, x, rors=(8, 4, 2, 1)):
    for r in rors: a(f"{op}_dpp {x}, {x}, {x} row_ror:{r} {DPPM}")
def rbf(dst, src): a(f"v_cvt_pk_bf16_f32 {dst}, 0, {src}")
def reduce8_g(A):
    for i in range(4): a(f"v_permlane32_swap_b32 v{A+i}, v{A+i+4}")
    for i in range(4): a(f"v_add_f32 v{A+i}, v{A+i}, v{A+i+4}")
    for i in range(2): a(f"v_permlane16_swap_b32 v{A+i}, v{A+i+2}")
    for i in range(2): a(f"v_add_f32 v{A+i}, v{A+i}, v{A+i+2}")
def EX(mask): a(f"s_mov_b64 s[32:33], exec\ns_mov_b64 exec, {mask}")
def EXR(): a("s_mov_b64 exec, s[32:33]")

XA_l, XA_h = 12, 13
XG = 17
MX = 23
ACC = 24
S = 32; AC2 = 32
WB = 64; GL = 76; TL = 64
QR = 88
PQ = 48
PG = 240
KB = 112; VB = 176
NVGPR = 256
M_C10 = "s[34:35]"; M_R4 = "s[36:37]"; M_L32 = "s[54:55]"; M_GV = "s[50:51]"; M_B1 = "s[30:31]"; M_B0 = "s[52:53]"

a("s_load_dwordx16 s[4:19], s[0:1], 0\ns_load_dwordx8 s[20:27], s[0:1], 64")
stamp(0)
if DIAG: a("s_memrealtime s[90:91]")
a(f"""
s_cmp_ge_u32 s2, 256
s_cbranch_scc1 L_end
s_and_b32 s28, s2, 31
s_lshr_b32 s29, s2, 5
v_lshlrev_b32 v1, 4, v0                       ; kv offset = tid*16
v_lshrrev_b32 v2, 6, v0
v_and_b32 v0, 63, v0
v_readfirstlane_b32 s3, v2
v_lshrrev_b32 v15, 4, v0                      ; g
v_and_b32 v3, 15, v0                          ; c
v_mul_u32_u24 v5, 10, v2
v_add_u32 v5, v5, v15
v_lshlrev_b32 v10, 13, v5
v_lshl_add_u32 v10, v3, 4, v10
v_mul_u32_u24 v9, 20, v0
v_lshrrev_b32 v6, 3, v0                       ; r
s_movk_i32 s39, 3456
v_mul_lo_u32 v11, v6, s39
v_and_b32 v7, 7, v0
v_lshl_add_u32 v11, v7, 4, v11
v_mov_b32 v97, 0
v_cmp_gt_u32 {M_C10}, 10, v3
v_cmp_gt_u32 {M_R4}, 4, v6
v_cmp_gt_u32 {M_L32}, 32, v0
v_and_b32 v7, 2, v0
v_cmp_ne_u32 {M_B1}, 0, v7
v_and_b32 v7, 1, v0
v_cmp_ne_u32 {M_B0}, 0, v7
s_lshl_b32 s38, s28, 23
s_lshl_b32 s39, s29, {13 if IL else 17}
s_add_u32 s38, s38, s39
s_add_u32 s38, s38, 7340032
s_min_u32 s46, s28, 26
s_lshl_b32 s40, s46, 7
s_lshl_b32 s41, s28, 8
s_mul_i32 s42, s29, {80*8192}
s_add_u32 s41, s41, s42
s_mul_i32 s42, s2, {REC}
s_mul_i32 s43, s28, {REC}
s_and_b32 s58, s3, 3
s_mul_i32 s58, s58, 20
s_mul_i32 s59, s29, 80
s_add_u32 s58, s58, s59
s_mul_i32 s59, s58, 3456
s_add_u32 s59, s59, s40
s_cmp_lt_u32 s28, 27
s_cselect_b64 {M_GV}, -1, 0
v_cndmask_b32 v11, 0, v11, {M_GV}
s_waitcnt lgkmcnt(0)
{"s_mov_b32 s94, s24" if DIAG else ""}
{"s_mov_b32 s95, s25" if DIAG else ""}
{"s_add_u32 s24, s24, 128" if DIAG else ""}
{"s_addc_u32 s25, s25, 0" if DIAG else ""}
s_add_u32 s44, s26, s42
s_addc_u32 s45, s27, 0
s_cmp_lg_u32 s3, 0
s_cbranch_scc1 L_noclear
v_mov_b32 v56, -1
v_mov_b32 v57, -1
v_mov_b32 v58, -1
v_mov_b32 v59, -1
v_lshlrev_b32 v60, 4, v0
global_store_dwordx4 v60, v[56:59], s[44:45] sc1
global_store_dwordx4 v60, v[56:59], s[44:45] offset:1024 sc1
global_store_dwordx4 v60, v[56:59], s[44:45] offset:2048 sc1
global_store_dwordx4 v60, v[56:59], s[44:45] offset:3072 sc1
v_add_u32 v61, 4096, v60
v_cmp_gt_u32 vcc, {(REC-4096)//16}, v0
s_and_saveexec_b64 s[32:33], vcc
global_store_dwordx4 v61, v[56:59], s[44:45] sc1
s_mov_b64 exec, s[32:33]
""")
a.label("L_noclear")
a(f"""
global_load_dwordx4 v[48:51], v9, s[4:5]
global_load_dword v52, v9, s[4:5] offset:16
s_add_u32 s6, s6, s38
s_addc_u32 s7, s7, 0
s_add_u32 s8, s8, s38
s_addc_u32 s9, s9, 0
s_add_u32 s10, s10, s41
s_addc_u32 s11, s11, 0
s_cmp_ge_u32 s3, 4
s_cselect_b32 s56, s18, s16
s_cselect_b32 s57, s19, s17
s_add_u32 s56, s56, s59
s_addc_u32 s57, s57, 0
s_add_u32 s48, s26, s43
s_addc_u32 s49, s27, 0
""")
stream = [("w", j) for j in range(3)] + [("g", i) for i in range(3)]
stream += [("k", j) for j in range(16)] + [("v", j) for j in range(TPOS)] + [("t", j) for j in range(6)] + [("v", j) for j in range(TPOS, 16)]
issued = [0]
order = []
def issue_next():
    if issued[0] >= len(stream): return
    kind, j = stream[issued[0]]
    order.append((kind, j))
    issued[0] += 1
    if kind == "w":
        if j == 2: EX(M_L32)
        a(f"global_load_dwordx4 {v4(WB+4*j)}, v10, s[10:11] nt")
        if j == 2: EXR()
        else: a("s_add_u32 s10, s10, 32768\ns_addc_u32 s11, s11, 0")
    elif kind in "kv":
        lo = 6 if kind == "k" else 8
        B = KB if kind == "k" else VB
        a(f"global_load_dwordx4 {v4(B+4*j)}, v1, s[{lo}:{lo+1}] nt")
        if j < 15: a(f"s_add_u32 s{lo}, s{lo}, {65536 if IL else 8192}\ns_addc_u32 s{lo+1}, s{lo+1}, 0")
    elif kind == "g":
        if j == 2: EX(M_R4)
        a(f"global_load_dwordx4 {v4(GL+4*j)}, v11, s[56:57] nt")
        if j == 2: EXR()
        else: a(f"s_add_u32 s56, s56, {8*3456}\ns_addc_u32 s57, s57, 0")
    elif kind == "t":
        EX(M_C10)
        if j < 4:
            a(f"global_load_dwordx4 {v4(TL+4*j)}, v98, s[{12 if j < 2 else 14}:{13 if j < 2 else 15}] offset:{(j&1)*1280} nt")
        else:
            a(f"global_load_dwordx4 {v4(TL+4*j)}, v99, s[20:21] offset:{(j&1)*1280} nt")
        EXR()
def wait_for(item):
    i = order.index(item)
    a(f"s_waitcnt vmcnt({len(order) - 1 - i})")
def refill(done_item):
    i = order.index(done_item)
    while issued[0] < len(stream) and len(order) - 1 - i < D:
        if TILE_LATE and stream[issued[0]][0] == "t": break
        issue_next()

for _ in range(6): issue_next()
if B0: a("s_barrier")
for _ in range(KINIT): issue_next()
a(f"s_waitcnt vmcnt({6 + KINIT})")
stamp(1)
a(f"""
s_cmp_lg_u32 s3, 0
s_cbranch_scc1 L_nosig
v_mov_b32 v57, 1
s_lshl_b32 s38, s28, 2
v_mov_b32 v58, s38
v_cmp_eq_u32 vcc, 0, v0
s_and_saveexec_b64 s[32:33], vcc
global_atomic_add v58, v57, s[24:25] sc1
s_mov_b64 exec, s[32:33]
""")
a.label("L_nosig")
for k in range(5):
    a(f"v_lshlrev_b32 v{24+k}, 16, v{48+k}\nv_and_b32 v{32+k}, 0xffff0000, v{48+k}")
a("""
v_add_f32 v53, v24, v32
v_add_f32 v54, v25, v33
v_add_f32 v55, v26, v34
v_add_f32 v56, v27, v35
v_add_f32 v57, v28, v36
v_add_f32 v53, v53, v54
v_add_f32 v55, v55, v56
v_add_f32 v53, v53, v57
v_add_f32 v53, v53, v55
""")
row_allreduce("v_add_f32", "v53")
rows_allreduce("v_add_f32", "v53", "v54")
a("v_mul_f32 v53, 0x3acccccd, v53")
XS = [24, 25, 26, 27, 28, 32, 33, 34, 35, 36]
a("v_sub_f32 v55, v24, v53\nv_mul_f32 v54, v55, v55")
for r in XS[1:]:
    a(f"v_sub_f32 v55, v{r}, v53\nv_fmac_f32 v54, v55, v55")
row_allreduce("v_add_f32", "v54")
rows_allreduce("v_add_f32", "v54", "v55")
a("v_mul_f32 v54, 0x3acccccd, v54")
rbf("v53", "v53"); rbf("v54", "v54")
a("v_add_f32 v54, 0x3727c5ac, v54")
rbf("v54", "v54")
a("""
v_sqrt_f32 v55, v54
v_rcp_f32 v56, v55
v_fma_f32 v57, -v55, v55, v54
v_mul_f32 v56, 0.5, v56
v_fma_f32 v55, v57, v56, v55
""")
rbf("v55", "v55")
a("v_rcp_f32 v56, v55")
for r in XS: a(f"v_sub_f32 v{r}, v{r}, v53")
for r in XS: rbf(v(r), v(r))
for r in XS:
    a(f"v_mul_f32 v57, v{r}, v56\nv_fma_f32 v58, -v57, v55, v{r}\nv_fma_f32 v{r}, v58, v56, v57")
for k in range(5): a(f"v_cvt_pk_bf16_f32 v{48+k}, v{24+k}, v{32+k}")
for k in range(5): a(f"ds_write_b32 v9, v{48+k} offset:{XN+4*k}")
a(f"""
s_mul_i32 s38, s3, 20
s_mul_i32 s39, s29, 160
s_add_u32 s38, s38, s39
v_lshlrev_b32 v5, 3, v3
v_lshl_add_u32 v5, v15, 1, v5
v_add_u32 v5, s38, v5
ds_read_u16 v{XA_l}, v5 offset:{XN}
s_lshl_b32 s38, s58, 1
v_lshrrev_b32 v6, 3, v0
v_lshl_add_u32 v6, v6, 1, s38
ds_read_u16 v{XG}, v6 offset:{XN}
ds_read_u16 v{XG+2}, v6 offset:{XN+16}
ds_read_u16 v{XG+4}, v6 offset:{XN+32}
""")
for i in range(16): a(f"v_mov_b32 v{ACC+i}, 0")
a(f"""
s_waitcnt lgkmcnt(0)
v_lshlrev_b32 v{XA_h}, 16, v{XA_l}
v_lshlrev_b32 v{XG+1}, 16, v{XG}
v_lshlrev_b32 v{XG+3}, 16, v{XG+2}
v_lshlrev_b32 v{XG+5}, 16, v{XG+4}
""")
for j in range(3):
    wait_for(("w", j))
    if j == 2: EX(M_L32)
    for i in range(4):
        a(f"v_dot2c_f32_bf16_dpp v{ACC+2*i}, v{XA_l}, v{WB+4*j+i} row_newbcast:{j} {DPPM}")
        a(f"v_dot2c_f32_bf16_dpp v{ACC+2*i+1}, v{XA_h}, v{WB+4*j+i} row_newbcast:{j} {DPPM}")
    if j == 2: EXR()
    refill(("w", j))
reduce8_g(ACC)
a(f"""
v_lshlrev_b32 v4, 5, v3
v_lshl_add_u32 v4, v15, 3, v4
s_mul_i32 s38, s3, {R1S}
v_add_u32 v5, s38, v4
ds_write_b64 v5, v[{ACC}:{ACC+1}] offset:{RED1}
""")
for j in range(3):
    wait_for(("g", j))
    if j == 2: EX(M_R4)
    for i in range(4):
        a(f"v_dot2c_f32_bf16 v{AC2+2*i}, v{XG+2*j}, v{GL+4*j+i}")
        a(f"v_dot2c_f32_bf16 v{AC2+2*i+1}, v{XG+2*j+1}, v{GL+4*j+i}")
    if j == 2: EXR()
    refill(("g", j))
reduce8_g(AC2)
a(f"""
v_add_f32_dpp v{AC2}, v{AC2}, v{AC2} row_ror:8 row_mask:0xf bank_mask:0x3
v_add_f32_dpp v{AC2}, v{AC2+1}, v{AC2+1} row_ror:8 row_mask:0xf bank_mask:0xc
v_and_b32 v5, 7, v0
v_lshlrev_b32 v5, 5, v5
v_lshrrev_b32 v6, 5, v0
v_lshl_add_u32 v5, v6, 4, v5
v_bfe_u32 v6, v0, 4, 1
v_lshl_add_u32 v5, v6, 3, v5
v_bfe_u32 v6, v0, 3, 1
v_lshl_add_u32 v5, v6, 2, v5
s_mul_i32 s38, s3, {R1S}
v_add_u32 v5, s38, v5
ds_write_b32 v5, v{AC2} offset:{RED1+512}
""")
if ECNT:
    a(f"""
s_cmp_lg_u32 s3, 0
s_cbranch_scc1 L_noec
v_and_b32 v8, 31, v0
v_lshlrev_b32 v8, 2, v8
global_load_dword v96, v8, s[24:25] sc1
""")
    a.label("L_noec")
    ecnt_mark = len(order)
a(f"""
s_waitcnt lgkmcnt(0)
s_barrier
v_and_b32 v6, 31, v0
v_lshrrev_b32 v7, 5, v0
s_cmp_ge_u32 s3, 4
s_cbranch_scc1 L_glupub
v_mul_u32_u24 v7, {4*R1S}, v7
v_lshl_add_u32 v7, v6, 2, v7
s_lshl_b32 s38, s3, 7
v_add_u32 v7, s38, v7
ds_read_b32 v48, v7 offset:{RED1}
ds_read_b32 v49, v7 offset:{RED1+R1S}
ds_read_b32 v50, v7 offset:{RED1+2*R1S}
ds_read_b32 v51, v7 offset:{RED1+3*R1S}
s_add_u32 s38, s38, {R_Q}
v_lshl_add_u32 v6, v6, 2, s38
s_waitcnt lgkmcnt(0)
v_add_f32 v48, v48, v49
v_add_f32 v50, v50, v51
v_add_f32 v48, v48, v50
s_branch L_pub0
""")
a.label("L_glupub")
a(f"""
v_mul_u32_u24 v7, {2*R1S}, v7
v_lshl_add_u32 v7, v6, 2, v7
s_and_b32 s38, s3, 1
s_lshl_b32 s38, s38, 7
s_bfe_u32 s39, s3, 0x10001
s_mul_i32 s40, s39, {4*R1S}
s_add_u32 s40, s40, s38
v_add_u32 v7, s40, v7
ds_read_b32 v48, v7 offset:{RED1+512}
ds_read_b32 v49, v7 offset:{RED1+512+R1S}
s_lshl_b32 s39, s39, 8
s_add_u32 s39, s39, s38
s_add_u32 s39, s39, {R_GLU}
v_lshl_add_u32 v6, v6, 2, s39
s_waitcnt lgkmcnt(0)
v_add_f32 v48, v48, v49
""")
a.label("L_pub0")
half_allreduce("v_add_f32", "v48", "v49")
a(f"v_min_u32 v48, 0xfffffffe, v48")
EX(M_L32)
a("global_store_dword v6, v48, s[44:45] sc1")
if 2 <= DUAL < 4: a("global_store_dword v6, v48, s[44:45]")
if DUAL >= 4: a(f"global_store_dword v6, v48, s[44:45] offset:{FOFF}")
EXR()
order.append(("pub", 0))
stamp(2)
a(f"""
s_lshl_b32 s38, s3, 4
v_lshl_add_u32 v98, v15, 1, s38
s_movk_i32 s39, 1280
v_mul_lo_u32 v98, v98, s39
v_lshl_add_u32 v98, v3, 4, v98
s_lshl_b32 s38, s3, 3
v_lshl_add_u32 v2, v15, 1, s38                ; 8w + 2g
v_mul_lo_u32 v99, v2, s39
v_lshl_add_u32 v99, v3, 4, v99
v_cndmask_b32 v99, 0, v99, {M_GV}
s_mul_i32 s38, s28, {128*1280}
s_mul_i32 s40, s29, 160
s_add_u32 s38, s38, s40
s_add_u32 s12, s12, s38
s_addc_u32 s13, s13, 0
s_mul_i32 s38, s46, {64*1280}
s_add_u32 s38, s38, s40
s_add_u32 s20, s20, s38
s_addc_u32 s21, s21, 0
s_add_u32 s14, s12, {8*1280}
s_addc_u32 s15, s13, 0
v_lshrrev_b32 v92, 5, v0
v_mul_u32_u24 v92, {32*REC}, v92
v_and_b32 v8, 31, v0
v_lshl_add_u32 v92, v8, 4, v92
v_add_u32 v93, {64*REC}, v92
v_add_u32 v94, {128*REC}, v92
v_add_u32 v95, {192*REC}, v92
v_lshlrev_b32 v8, 2, v8
s_cmp_eq_u32 s3, 0
s_cselect_b32 s58, {2 if NOEX else 0}, 2
s_add_u32 s42, s48, {FOFF}
s_addc_u32 s43, s49, 0
""")
def cnt_issue(): a("global_load_dword v96, v8, s[24:25] sc1")
def data_issue(fast=False):
    b = "s[42:43]" if fast else "s[48:49]"
    for k in range(4): a(f"global_load_dwordx4 {v4(PQ+4*k)}, v{92+k}, {b} offset:{R_Q} sc1")
    for k in range(4): a(f"global_load_dwordx4 {v4(PG+4*k)}, v{92+k}, {b} offset:{R_GLU} sc1")
def checkpoint(n, first=False, fast=False):
    a(f"s_cmp_eq_u32 s58, 2\ns_cbranch_scc1 L_ck{n}_skip")
    if first:
        cnt_issue()
    else:
        a(f"""
s_cmp_eq_u32 s58, 1
s_cbranch_scc1 L_ck{n}_data
v_readlane_b32 s38, v96, s28
s_cmp_ge_u32 s38, 8
s_cbranch_scc1 L_ck{n}_cntok
""")
        cnt_issue()
        a(f"s_branch L_ck{n}_skip")
        a.label(f"L_ck{n}_data")
        regs = list(range(PQ, PQ+16)) + list(range(PG, PG+16))
        a(f"v_max3_u32 v100, v{regs[0]}, v{regs[1]}, v{regs[2]}")
        a(f"v_max3_u32 v101, v{regs[3]}, v{regs[4]}, v{regs[5]}")
        rest = regs[6:]
        for i in range(0, len(rest), 2):
            a(f"v_max3_u32 v{100+(i//2)%2}, v{100+(i//2)%2}, v{rest[i]}, v{rest[i+1]}")
        a(f"""
v_max_u32 v100, v100, v101
v_cmp_eq_u32 vcc, -1, v100
s_cbranch_vccnz L_ck{n}_cntok
s_mov_b32 s58, 2
s_branch L_ck{n}_skip
""")
        a.label(f"L_ck{n}_cntok")
        a("s_mov_b32 s58, 1")
        data_issue(fast and DUAL >= 4)
    a.label(f"L_ck{n}_skip")
kv_items = [("k", j) for j in range(16)] + [("v", j) for j in range(B2_AT + 1)]
nck = 0
started = bool(ECNT)
mark = ecnt_mark if ECNT else None
for it in kv_items:
    if order.index(it) < 6 + KINIT - 100: continue
    wait_for(it)
    if it[0] == "k" and it[1] % 4 == 3 and it[1] > 8: stamp(8 + it[1] // 4)
    if not started and it[1] >= CNT_AT:
        checkpoint(nck, first=True); nck += 1; started = True; mark = len(order)
    elif started and order.index(it) >= mark:
        checkpoint(nck, fast=True); nck += 1
        mark = len(order)
    refill(it)
for _ in range(TOP1): issue_next()
a(f"s_cmp_lg_u32 s3, 0\ns_cbranch_scc1 L_b2")
a(f"s_cmp_eq_u32 s58, 2\ns_cbranch_scc1 L_pqok\ns_waitcnt vmcnt({len(order) - mark})")
checkpoint(nck); nck += 1
a("s_mov_b32 s47, 0")
a.label("L_pqloop")
a(f"""
s_cmp_eq_u32 s58, 2
s_cbranch_scc1 L_pqok
s_add_u32 s47, s47, 1
s_cmp_ge_u32 s47, {SPIN_MAX}
s_cbranch_scc1 L_pqok
s_waitcnt vmcnt(0)
""")
checkpoint(nck, fast=True)
a("s_waitcnt vmcnt(0)")
checkpoint(nck + 1)
a("s_branch L_pqloop")
a.label("L_pqok")
for i in range(4):
    a(f"v_add_f32 v{PQ+i}, v{PQ+i}, v{PQ+4+i}\nv_add_f32 v{PQ+8+i}, v{PQ+8+i}, v{PQ+12+i}")
    a(f"v_add_f32 v{PG+i}, v{PG+i}, v{PG+4+i}\nv_add_f32 v{PG+8+i}, v{PG+8+i}, v{PG+12+i}")
for i in range(4):
    a(f"v_add_f32 v{PQ+i}, v{PQ+i}, v{PQ+8+i}\nv_add_f32 v{PG+i}, v{PG+i}, v{PG+8+i}")
for i in range(4):
    half_allreduce("v_add_f32", v(PQ+i), v(PQ+4+i))
    half_allreduce("v_add_f32", v(PG+i), v(PG+4+i))
a(f"""
v_cvt_pk_bf16_f32 v{PQ+4}, v{PQ}, v{PQ+1}
v_cvt_pk_bf16_f32 v{PQ+5}, v{PQ+2}, v{PQ+3}
v_lshlrev_b32 v5, 1, v8                       ; (l&31)*8
ds_write_b64 v5, v[{PQ+4}:{PQ+5}] offset:{QF}
""")
for i in range(4):
    rbf(v(PG+i), v(PG+i))
for i in range(4):
    a(f"v_mov_b32 v{PG+4+i}, v{PG+i}\nv_permlane16_swap_b32 v{PG+i}, v{PG+4+i}")
for i in range(4):
    g_, u_, t0, t1 = PG+i, PG+4+i, PG+8+i, PG+12+i
    a(f"""
v_mul_f32 v{g_}, {LOG2E ^ 0x80000000:#x}, v{g_}
v_min_f32 v{g_}, 0x42fc0000, v{g_}
v_exp_f32 v{g_}, v{g_}
v_add_f32 v{g_}, 1.0, v{g_}
v_rcp_f32 v{t0}, v{g_}
v_fma_f32 v{t1}, -v{t0}, v{g_}, 1.0
v_fma_f32 v{t0}, v{t1}, v{t0}, v{t0}
""")
    rbf(v(t0), v(t0))
    a(f"v_mul_f32 v{t0}, v{t0}, v{u_}\nv_cndmask_b32 v{t0}, 0, v{t0}, {M_GV}")
a(f"""
v_cvt_pk_bf16_f32 v{PG}, v{PG+8}, v{PG+9}
v_cvt_pk_bf16_f32 v{PG+1}, v{PG+10}, v{PG+11}
v_lshlrev_b32 v5, 3, v3
ds_write_b64 v5, v[{PG}:{PG+1}] offset:{HF}
s_waitcnt lgkmcnt(0)
""")
a.label("L_b2")
a(f"""
s_barrier
v_lshlrev_b32 v6, 4, v3
ds_read_b128 {v4(QR)}, v6 offset:{QF}
""")
for j in range(16): a(f"v_mov_b32 v{S+j}, 0")
a("s_waitcnt lgkmcnt(0)")
for i in range(4):
    for j in range(16):
        a(f"v_dot2c_f32_bf16 v{S+j}, v{KB+4*j+i}, v{QR+i}")
for i in range(8):
    a(f"v_add_f32_dpp v{S+i}, v{S+i}, v{S+i} row_ror:8 row_mask:0xf bank_mask:0x3")
    a(f"v_add_f32_dpp v{S+i}, v{S+i+8}, v{S+i+8} row_ror:8 row_mask:0xf bank_mask:0xc")
for i in range(4):
    a(f"v_add_f32_dpp v{S+i}, v{S+i}, v{S+i} row_half_mirror row_mask:0xf bank_mask:0x5")
    a(f"v_add_f32_dpp v{S+i}, v{S+i+4}, v{S+i+4} row_half_mirror row_mask:0xf bank_mask:0xa")
a(f"""
v_cndmask_b32 v{S+4}, v{S}, v{S+2}, {M_B1}
v_cndmask_b32 v{S+5}, v{S+2}, v{S}, {M_B1}
v_cndmask_b32 v{S+6}, v{S+1}, v{S+3}, {M_B1}
v_cndmask_b32 v{S+7}, v{S+3}, v{S+1}, {M_B1}
v_add_f32_dpp v{S}, v{S+5}, v{S+4} quad_perm:[2,3,0,1] {DPPM}
v_add_f32_dpp v{S+1}, v{S+7}, v{S+6} quad_perm:[2,3,0,1] {DPPM}
v_cndmask_b32 v{S+2}, v{S}, v{S+1}, {M_B0}
v_cndmask_b32 v{S+3}, v{S+1}, v{S}, {M_B0}
v_add_f32_dpp v{S}, v{S+3}, v{S+2} quad_perm:[1,0,3,2] {DPPM}
""")
for _ in range(TOP2): issue_next()
rbf(v(S), v(S))
a(f"v_mul_f32 v{S}, {SCALE:#x}, v{S}")
rbf(v(S), v(S))
a(f"v_mov_b32 v{S+6}, v{S}")
row_allreduce("v_max_f32", v(S+6))
rows_allreduce("v_max_f32", v(S+6), v(S+2))
a(f"""
v_sub_f32 v{S+7}, v{S}, v{S+6}
v_mul_f32 v{S+7}, {LOG2E:#x}, v{S+7}
v_exp_f32 v{S+7}, v{S+7}
""")
row_allreduce("v_add_f32", v(S+7))
rows_allreduce("v_add_f32", v(S+7), v(S+3))
a(f"""
s_lshl_b32 s38, s3, 3
v_mov_b32 v6, s38
ds_write_b64 v6, v[{S+6}:{S+7}] offset:{MAXA}
s_waitcnt lgkmcnt(0)
s_barrier
v_and_b32 v7, 7, v0
v_lshlrev_b32 v7, 3, v7
ds_read_b64 v[{S+4}:{S+5}], v7 offset:{MAXA}
v_lshlrev_b32 v7, 1, v2
ds_read_b32 v18, v7 offset:{HF}
s_waitcnt lgkmcnt(0)
v_mov_b32 v{S+1}, v{S+4}
""")
row_allreduce("v_max_f32", v(S+1), (4, 2, 1))
PL, PH = S + 2, S + 3
LW = 22
a(f"""
v_sub_f32 v{S+4}, v{S+4}, v{S+1}
v_mul_f32 v{S+4}, {LOG2E:#x}, v{S+4}
v_exp_f32 v{S+4}, v{S+4}
v_min_u32 v{MX}, 0xfffffffe, v{S+1}
v_sub_f32 v{S}, v{S}, v{S+1}
v_mul_f32 v{S}, {LOG2E:#x}, v{S}
v_exp_f32 v{S}, v{S}
v_mul_f32 v{LW}, v{S+5}, v{S+4}
v_cvt_pk_bf16_f32 v{PL}, v{S}, 0
v_cvt_pk_bf16_f32 v{PH}, 0, v{S}
""")
row_allreduce("v_add_f32", v(LW), (4, 2, 1))
a(f"""
v_min_u32 v{LW}, 0xfffffffe, v{LW}
s_lshl_b32 s38, s3, 9
v_add_u32 v10, s38, v4
v_and_b32 v5, 7, v0
v_lshrrev_b32 v6, 3, v0
v_lshlrev_b32 v6, 9, v6
v_lshl_add_u32 v6, v5, 3, v6
s_lshl_b32 s38, s3, 6
v_add_u32 v11, s38, v6
s_lshl_b32 s38, s3, 7
v_lshl_add_u32 v12, v5, 4, s38
v_lshrrev_b32 v6, 1, v3
v_mul_u32_u24 v6, {32*REC}, v6
v_and_b32 v7, 1, v3
v_lshl_add_u32 v7, v7, 2, v15
v_lshl_add_u32 v9, v7, 4, v6
v_add_u32 v9, s38, v9
v_cmp_gt_u32 s[56:57], 8, v0
v_lshrrev_b32 v6, 1, v15
v_mul_u32_u24 v6, 320, v6
v_lshl_add_u32 v6, v3, 5, v6
v_and_b32 v7, 1, v15
v_lshl_add_u32 v6, v7, 4, v6
s_mul_i32 s39, s3, 640
v_add_u32 v14, s39, v6
v_and_b32 v6, 31, v0
v_lshrrev_b32 v7, 5, v0
v_mul_u32_u24 v7, {4*640}, v7
v_lshl_add_u32 v7, v6, 2, v7
v_add_u32 v16, s38, v7
v_lshl_add_u32 v17, v6, 2, s38
v_and_b32 v19, 0xffff, v18
v_lshlrev_b32 v20, 16, v18
v_lshrrev_b32 v21, 16, v18
v_and_b32 v18, 0xffff0000, v18
""")
stamp(3)
for i in range(8): a(f"v_mov_b32 v{ACC+i}, 0")
B2_ITEM = ("v", B2_AT) if B2_AT >= 0 else ("k", 15)
pos_b2 = stream.index(B2_ITEM)
last_v = stream.index(("v", 15))
for pi, it in enumerate(stream):
    if it[0] not in "vt" or pi > last_v: continue
    if pi > pos_b2:
        wait_for(it)
        refill(it)
    elif pi == stream.index(("v", 0)):
        refill(B2_ITEM)
    if pi == last_v:
        while issued[0] < len(stream): issue_next()
    if it[0] == "v":
        j = it[1]
        if j % 4 == 3: stamp(12 + j // 4)
        for i in range(4):
            a(f"v_dot2c_f32_bf16_dpp v{ACC+2*i}, v{PL}, v{VB+4*j+i} row_newbcast:{j} {DPPM}")
            a(f"v_dot2c_f32_bf16_dpp v{ACC+2*i+1}, v{PH}, v{VB+4*j+i} row_newbcast:{j} {DPPM}")
reduce8_g(ACC)
a(f"""
ds_write_b64 v10, v[{ACC}:{ACC+1}] offset:{RED2}
v_mov_b32 v50, v{MX}
v_mov_b32 v51, v{LW}
s_waitcnt lgkmcnt(0)
s_barrier
""")
stamp(4)
if DIAG: a("s_memrealtime s[96:97]")
a(f"""
ds_read_b64 v[48:49], v11 offset:{RED2}
s_waitcnt lgkmcnt(0)
v_add_f32_dpp v48, v48, v48 row_ror:8 {DPPM}
v_add_f32_dpp v49, v49, v49 row_ror:8 {DPPM}
v_mov_b32 v52, v48
v_mov_b32 v53, v49
v_permlane32_swap_b32 v48, v52
v_permlane32_swap_b32 v49, v53
v_add_f32 v48, v48, v52
v_add_f32 v49, v49, v53
v_mov_b32 v52, v48
v_mov_b32 v53, v49
v_permlane16_swap_b32 v48, v52
v_permlane16_swap_b32 v49, v53
v_add_f32 v48, v48, v52
v_add_f32 v49, v49, v53
v_min_u32 v48, 0xfffffffe, v48
v_min_u32 v49, 0xfffffffe, v49
s_mov_b64 s[32:33], exec
s_mov_b64 exec, s[56:57]
global_store_dwordx4 v12, v[48:51], s[44:45] offset:{R_O2}
global_store_dwordx4 v12, v[48:51], s[44:45] offset:{R_O} sc1
s_mov_b64 exec, s[32:33]
""")
def pissue(k):
    a(f"global_load_dwordx4 v[{100+4*k}:{103+4*k}], v9, s[48:49] offset:{R_O2 if DUAL >= 3 else R_O} {FASTF if DUAL >= 3 else 'sc1'}")
assert NPOLL <= 3
pissue(0)
stamp(8)
a(f"""
s_cmp_lg_u32 s28, s29
s_cbranch_scc1 L_nofc
s_cmp_lg_u32 s3, 7
s_cbranch_scc1 L_nofc
s_mov_b32 s47, 0
""")
a.label("L_poll_c")
a(f"""
global_load_dword v48, v8, s[24:25] sc1
s_waitcnt vmcnt(0)
v_cmp_gt_u32 vcc, 8, v48
s_cbranch_vccz L_nofc
s_add_u32 s47, s47, 1
s_cmp_lt_u32 s47, {SPIN_MAX}
s_cbranch_scc1 L_poll_c
""")
a.label("L_nofc")
for i in range(16): a(f"v_mov_b32 v{ACC+i}, 0")
a(f"""
s_waitcnt vmcnt(3)
""")
for i in range(2):
    for k in range(4):
        a(f"v_cndmask_b32 v{TL+16+4*i+k}, 0, v{TL+16+4*i+k}, {M_GV}")
for i in range(2):
    for k in range(4):
        a(f"v_dot2c_f32_bf16 v{AC2+2*k}, v{(19, 21)[i]}, v{TL+16+4*i+k}")
        a(f"v_dot2c_f32_bf16 v{AC2+2*k+1}, v{(20, 18)[i]}, v{TL+16+4*i+k}")
a("s_mov_b32 s47, 0")
for k in range(1, NPOLL - 1):
    pissue(k)
    a(f"s_sleep {POLLGAP}")
a.label("L_poll_o")
if POLLNT:
    assert NPOLL == 1
    for t in range(POLLNT + 1):
        a(f"""
s_waitcnt vmcnt(0)
v_max3_u32 v52, v100, v101, v102
v_max_u32 v52, v52, v103
v_cmp_eq_u32 vcc, -1, v52
s_cbranch_vccz L_poll_o_ok0
global_load_dwordx4 v[100:103], v9, s[48:49] offset:{(R_O2 if DUAL >= 3 else R_O) if t < POLLNT else R_O} {FASTF if t < POLLNT else "sc1"}
""")
else:
  for k in range(NPOLL):
    if NPOLL > 1: pissue((k + NPOLL - 1) % NPOLL)
    b = 100 + 4*k
    a(f"""
s_waitcnt vmcnt({NPOLL-1})
v_max3_u32 v52, v{b}, v{b+1}, v{b+2}
v_max_u32 v52, v52, v{b+3}
v_cmp_eq_u32 vcc, -1, v52
s_cbranch_vccz L_poll_o_ok{k}
""")
    if NPOLL == 1:
        if PSLEEP: a(f"s_sleep {PSLEEP}")
        pissue(0)
a(f"""
s_add_u32 s47, s47, 1
s_cmp_lt_u32 s47, {SPIN_MAX}
s_cbranch_scc1 L_poll_o
""")
for k in range(NPOLL):
    a.label(f"L_poll_o_ok{k}")
    for i in range(4): a(f"v_mov_b32 v{48+i}, v{100+4*k+i}")
    if k < NPOLL - 1: a("s_branch L_poll_o_ok")
a.label("L_poll_o_ok")
stamp(5)
if STAMPS: a("s_mov_b32 s78, s47\ns_mov_b32 s79, 0")
a("v_mov_b32 v52, v50")
row_allreduce("v_max_f32", "v52", (8, 4, 2))
a(f"""
v_sub_f32 v50, v50, v52
v_mul_f32 v50, {LOG2E:#x}, v50
v_exp_f32 v50, v50
v_mul_f32 v51, v51, v50
v_mul_f32 v48, v48, v50
v_mul_f32 v49, v49, v50
""")
for r in (8, 4, 2):
    for x in (51, 48, 49):
        a(f"v_add_f32_dpp v{x}, v{x}, v{x} row_ror:{r} {DPPM}")
a(f"""
v_rcp_f32 v52, v51
v_mul_f32 v53, v48, v52
v_mul_f32 v54, v49, v52
v_fma_f32 v55, -v53, v51, v48
v_fma_f32 v56, -v54, v51, v49
v_fma_f32 v53, v55, v52, v53
v_fma_f32 v54, v56, v52, v54
v_cvt_pk_bf16_f32 v55, v53, 0
v_cvt_pk_bf16_f32 v56, 0, v53
v_cvt_pk_bf16_f32 v57, v54, 0
v_cvt_pk_bf16_f32 v58, 0, v54
""")
for j in range(4):
    lo = 55 + 2*(j & 1)
    for i in range(4):
        a(f"v_dot2c_f32_bf16_dpp v{ACC+2*i}, v{lo}, v{TL+4*j+i} row_newbcast:{j>>1} {DPPM}")
        a(f"v_dot2c_f32_bf16_dpp v{ACC+2*i+1}, v{lo+1}, v{TL+4*j+i} row_newbcast:{j>>1} {DPPM}")
for i in range(8): a(f"v_permlane32_swap_b32 v{ACC+i}, v{AC2+i}")
for i in range(8): a(f"v_add_f32 v{ACC+i}, v{ACC+i}, v{AC2+i}")
for i in range(4): a(f"v_permlane16_swap_b32 v{ACC+i}, v{ACC+i+4}")
for i in range(4): a(f"v_add_f32 v{ACC+i}, v{ACC+i}, v{ACC+i+4}")
EX(M_C10)
a(f"ds_write_b128 v14, v[{ACC}:{ACC+3}] offset:{RED3}")
EXR()
a(f"""
s_waitcnt lgkmcnt(0)
s_barrier
s_cmp_gt_u32 s3, 4
s_cbranch_scc1 L_pub2done
ds_read_b32 v48, v16 offset:{RED3}
ds_read_b32 v49, v16 offset:{RED3+640}
ds_read_b32 v50, v16 offset:{RED3+1280}
ds_read_b32 v51, v16 offset:{RED3+1920}
s_waitcnt lgkmcnt(0)
v_add_f32 v48, v48, v49
v_add_f32 v50, v50, v51
v_add_f32 v48, v48, v50
""")
half_allreduce("v_add_f32", "v48", "v49")
a("v_min_u32 v48, 0xfffffffe, v48")
EX(M_L32)
a(f"global_store_dword v17, v48, s[44:45] offset:{R_Y} sc1")
EXR()
a.label("L_pub2done")
stamp(6)
a(f"""
s_cmp_lg_u32 s28, s29
s_cbranch_scc1 L_fin_end
s_mul_i32 s38, s29, {32*REC}
s_mul_i32 s39, s3, {4*REC}
s_add_u32 s38, s38, s39
s_add_u32 s38, s38, {R_Y}
s_add_u32 s40, s26, s38
s_addc_u32 s41, s27, 0
s_add_u32 s42, s40, {2*REC}
s_addc_u32 s43, s41, 0
v_lshlrev_b32 v6, 4, v0
v_add_u32 v10, {REC}, v6
s_mul_i32 s38, s29, 160
s_lshl_b32 s39, s3, 5
s_add_u32 s38, s38, s39
v_lshl_add_u32 v8, v3, 1, s38
v_min_u32 v8, 1278, v8
global_load_ushort v9, v8, s[4:5]
v_cmp_gt_u32 vcc, 40, v0
s_and_saveexec_b64 s[32:33], vcc
s_mov_b32 s47, 0
""")
a.label("L_poll_y")
a(f"""
global_load_dwordx4 v[24:27], v6, s[40:41] sc1
global_load_dwordx4 v[28:31], v10, s[40:41] sc1
global_load_dwordx4 v[32:35], v6, s[42:43] sc1
global_load_dwordx4 v[36:39], v10, s[42:43] sc1
s_waitcnt vmcnt(0)
v_max3_u32 v48, v24, v25, v26
v_max3_u32 v49, v27, v28, v29
v_max3_u32 v50, v30, v31, v32
v_max3_u32 v51, v33, v34, v35
v_max3_u32 v52, v36, v37, v38
v_max3_u32 v48, v48, v49, v39
v_max3_u32 v50, v50, v51, v52
v_max_u32 v48, v48, v50
v_cmp_eq_u32 vcc, -1, v48
s_cbranch_vccz L_poll_y_ok
s_add_u32 s47, s47, 1
s_cmp_lt_u32 s47, {SPIN_MAX}
s_cbranch_scc1 L_poll_y
""")
a.label("L_poll_y_ok")
for i in range(4):
    a(f"v_add_f32 v{24+i}, v{24+i}, v{28+i}\nv_add_f32 v{32+i}, v{32+i}, v{36+i}")
for i in range(4):
    a(f"v_add_f32 v{24+i}, v{24+i}, v{32+i}")
a(f"""
s_mul_i32 s38, s3, 640
v_add_u32 v7, s38, v6
ds_write_b128 v7, v[24:27] offset:{RED4}
s_mov_b64 exec, s[32:33]
s_waitcnt lgkmcnt(0)
s_barrier
s_cmp_gt_u32 s3, 4
s_cbranch_scc1 L_fin_end
v_lshrrev_b32 v6, 1, v15
v_mul_u32_u24 v6, 320, v6
v_and_b32 v7, 1, v15
v_mul_u32_u24 v7, {4*640}, v7
v_add_u32 v6, v6, v7
v_lshl_add_u32 v6, v3, 2, v6
s_lshl_b32 s38, s3, 6
v_add_u32 v6, s38, v6
ds_read_b32 v48, v6 offset:{RED4}
ds_read_b32 v49, v6 offset:{RED4+640}
ds_read_b32 v50, v6 offset:{RED4+1280}
ds_read_b32 v51, v6 offset:{RED4+1920}
s_waitcnt lgkmcnt(0)
v_add_f32 v48, v48, v49
v_add_f32 v50, v50, v51
v_add_f32 v48, v48, v50
v_mov_b32 v49, v48
v_permlane16_swap_b32 v48, v49
v_add_f32 v48, v48, v49
""")
rbf("v48", "v48")
a(f"""
v_mov_b32 v49, v48
v_permlane32_swap_b32 v48, v49
v_lshlrev_b32 v9, 16, v9
v_add_f32 v48, v9, v48
""")
rbf("v48", "v48")
a(f"""
v_add_f32 v48, v48, v49
v_cvt_pk_bf16_f32 v48, v48, 0
v_cmp_gt_u32 vcc, 16, v0
s_and_saveexec_b64 s[32:33], vcc
global_store_short v8, v48, s[22:23]
s_mov_b64 exec, s[32:33]
""")
a.label("L_fin_end")
stamp(7)
if DIAG:
    a("""
s_memrealtime s[92:93]
s_waitcnt lgkmcnt(0)
s_cmp_lg_u32 s3, 0
s_cbranch_scc1 L_end
v_cmp_eq_u32 vcc, 0, v0
s_and_saveexec_b64 s[32:33], vcc
s_not_b32 s90, s90
v_mov_b32 v1, 0
v_mov_b32 v2, s90
v_mov_b32 v3, s92
v_mov_b32 v4, s96
global_atomic_umax v1, v2, s[94:95] sc1
global_atomic_umax v1, v3, s[94:95] offset:4 sc1
global_atomic_umax v1, v4, s[94:95] offset:8 sc1
""")
if STAMPS:
    a(f"""
s_waitcnt lgkmcnt(0)
s_cmp_lg_u32 s3, {STAMPWAVE}
s_cbranch_scc1 L_end
v_cmp_eq_u32 vcc, 0, v0
s_and_saveexec_b64 s[32:33], vcc
s_mul_i32 s38, s2, {NST*8}
s_add_u32 s38, s38, {STAMP_OFF}
v_mov_b32 v1, s38
""")
    for i in range(NST):
        a(f"v_mov_b32 v2, s{60+2*i}\nv_mov_b32 v3, s{61+2*i}\nglobal_store_dwordx2 v1, v[2:3], s[26:27] offset:{8*i}")
a.label("L_end")
a("s_endpgm")

hdr = open("parallel_sum__sliding_block_cached__glu_gated_glu__decode.s.ref").read().split("; Override")[0]
out = hdr + f"""; Override launch geometry by editing the next line (default: block=256,
; grid=ceil(out_elems/256), lds=0). Harness parses it; keep it on one line.
; @launch grid=(256,1,1) block=(512,1,1) lds={LDS_BYTES}
.amdgcn_target "amdgcn-amd-amdhsa--gfx950"
.text
.globl {NAME}
.p2align 8
.type {NAME},@function
{NAME}:
""" + a.render() + f""".section .rodata,"a"
.p2align 6
.amdhsa_kernel {NAME}
  .amdhsa_next_free_vgpr {NVGPR}
  .amdhsa_next_free_sgpr 102
  .amdhsa_accum_offset {NVGPR}
  .amdhsa_group_segment_fixed_size 0
  .amdhsa_kernarg_size 96
  .amdhsa_user_sgpr_count 2
  .amdhsa_user_sgpr_kernarg_segment_ptr 1
  .amdhsa_system_sgpr_workgroup_id_x 1
.end_amdhsa_kernel
"""
open(sys.argv[1], "w").write(out)
```

```python
import sys, os
from asmlib import Asm
NAME = "parallel_sum__sliding_block_cached__glu_gated_glu__decode_kernel"
E = lambda k, d: int(os.environ.get(k, str(d)))
STAMPS = E("STAMPS", 0); STAMPWAVE = E("STAMPWAVE", 0)
D = E("DEPTH", 6); KINIT = E("KINIT", 0); B2_AT = E("B2_AT", 3); TILE_LATE = E("TILE_LATE", 0)
FASTF = os.environ.get("FASTF", "sc1"); VMAX = E("VMAX", 7); ECNT = E("ECNT", 1); TOP1 = E("TOP1", 0); TOP2 = E("TOP2", 4); DIAG = E("DIAG", 0); TPOS = E("TPOS", 16); POLLNT = E("POLLNT", 3); DUAL = E("DUAL", 4); PSLEEP = E("PSLEEP", 0); IL = E("IL", 1); NPOLLY = E("NPOLLY", 1); B0 = E("B0", 0); NPOLL = E("NPOLL", 1); POLLGAP = E("POLLGAP", 2); NOEX = E("NOEX", 0); CNT_AT = E("CNT_AT", 0)
NST = 16
XN = 0
RED1 = 1280; R1S = 784
QF = RED1 + 8 * R1S
HF = QF + 256
OF = HF + 128
MAXA = OF + 256
LRED = MAXA + 64
RED2 = LRED + 64
RED3 = RED2 + 4096
RED4 = RED3 + 5120
LDS_BYTES = RED4 + 5120
assert QF % 16 == 0 and RED3 % 16 == 0 and RED4 % 16 == 0
REC = 4736
R_O = 0; R_ML = 512; R_GLU = 1024; R_Q = 1536; R_Y = 2048; R_O2 = 2688; FOFF = 2688
STAMP_OFF = 2 << 20
LOG2E = 0x3fb8aa3b
SCALE = 0x3db504f3
SPIN_MAX = 200000

a = Asm()
def stamp(i):
    if STAMPS: a(f"s_memrealtime s[{60+2*i}:{61+2*i}]")
def v(n): return f"v{n}"
def v4(n): return f"v[{n}:{n+3}]"
DPPM = "row_mask:0xf bank_mask:0xf"
def half_allreduce(op, x, t):
    a(f"v_mov_b32 {t}, {x}\nv_permlane32_swap_b32 {x}, {t}\n{op} {x}, {x}, {t}")
def rows_allreduce(op, x, t):
    half_allreduce(op, x, t)
    a(f"v_mov_b32 {t}, {x}\nv_permlane16_swap_b32 {x}, {t}\n{op} {x}, {x}, {t}")
def row_allreduce(op, x, rors=(8, 4, 2, 1)):
    for r in rors: a(f"{op}_dpp {x}, {x}, {x} row_ror:{r} {DPPM}")
def rbf(dst, src): a(f"v_cvt_pk_bf16_f32 {dst}, 0, {src}")
def reduce8_g(A):
    for i in range(4): a(f"v_permlane32_swap_b32 v{A+i}, v{A+i+4}")
    for i in range(4): a(f"v_add_f32 v{A+i}, v{A+i}, v{A+i+4}")
    for i in range(2): a(f"v_permlane16_swap_b32 v{A+i}, v{A+i+2}")
    for i in range(2): a(f"v_add_f32 v{A+i}, v{A+i}, v{A+i+2}")
def EX(mask): a(f"s_mov_b64 s[32:33], exec\ns_mov_b64 exec, {mask}")
def EXR(): a("s_mov_b64 exec, s[32:33]")

XA_l, XA_h = 12, 13
XG = 17
MX = 23
ACC = 24
S = 32; AC2 = 32
WB = 64; GL = 76; TL = 64
QR = 88
PQ = 48
PG = 240
KB = 112; VB = 176
NVGPR = 256
M_C10 = "s[34:35]"; M_R4 = "s[36:37]"; M_L32 = "s[54:55]"; M_GV = "s[50:51]"; M_B1 = "s[30:31]"; M_B0 = "s[52:53]"

a("s_load_dwordx16 s[4:19], s[0:1], 0\ns_load_dwordx8 s[20:27], s[0:1], 64")
stamp(0)
if DIAG: a("s_memrealtime s[90:91]")
a(f"""
s_cmp_ge_u32 s2, 256
s_cbranch_scc1 L_end
s_and_b32 s28, s2, 31
s_lshr_b32 s29, s2, 5
v_lshlrev_b32 v1, 4, v0                       ; kv offset = tid*16
v_lshrrev_b32 v2, 6, v0
v_and_b32 v0, 63, v0
v_readfirstlane_b32 s3, v2
v_lshrrev_b32 v15, 4, v0                      ; g
v_and_b32 v3, 15, v0                          ; c
v_mul_u32_u24 v5, 10, v2
v_add_u32 v5, v5, v15
v_lshlrev_b32 v10, 13, v5
v_lshl_add_u32 v10, v3, 4, v10
v_mul_u32_u24 v9, 20, v0
v_lshrrev_b32 v6, 3, v0                       ; r
s_movk_i32 s39, 3456
v_mul_lo_u32 v11, v6, s39
v_and_b32 v7, 7, v0
v_lshl_add_u32 v11, v7, 4, v11
v_mov_b32 v97, 0
v_cmp_gt_u32 {M_C10}, 10, v3
v_cmp_gt_u32 {M_R4}, 4, v6
v_cmp_gt_u32 {M_L32}, 32, v0
v_and_b32 v7, 2, v0
v_cmp_ne_u32 {M_B1}, 0, v7
v_and_b32 v7, 1, v0
v_cmp_ne_u32 {M_B0}, 0, v7
s_lshl_b32 s38, s28, 23
s_lshl_b32 s39, s29, {13 if IL else 17}
s_add_u32 s38, s38, s39
s_add_u32 s38, s38, 7340032
s_min_u32 s46, s28, 26
s_lshl_b32 s40, s46, 7
s_lshl_b32 s41, s28, 8
s_mul_i32 s42, s29, {80*8192}
s_add_u32 s41, s41, s42
s_mul_i32 s42, s2, {REC}
s_mul_i32 s43, s28, {REC}
s_and_b32 s58, s3, 3
s_mul_i32 s58, s58, 20
s_mul_i32 s59, s29, 80
s_add_u32 s58, s58, s59
s_mul_i32 s59, s58, 3456
s_add_u32 s59, s59, s40
s_cmp_lt_u32 s28, 27
s_cselect_b64 {M_GV}, -1, 0
v_cndmask_b32 v11, 0, v11, {M_GV}
s_waitcnt lgkmcnt(0)
{"s_mov_b32 s94, s24" if DIAG else ""}
{"s_mov_b32 s95, s25" if DIAG else ""}
{"s_add_u32 s24, s24, 128" if DIAG else ""}
{"s_addc_u32 s25, s25, 0" if DIAG else ""}
s_add_u32 s44, s26, s42
s_addc_u32 s45, s27, 0
s_cmp_lg_u32 s3, 0
s_cbranch_scc1 L_noclear
v_mov_b32 v56, -1
v_mov_b32 v57, -1
v_mov_b32 v58, -1
v_mov_b32 v59, -1
v_lshlrev_b32 v60, 4, v0
global_store_dwordx4 v60, v[56:59], s[44:45] sc1
global_store_dwordx4 v60, v[56:59], s[44:45] offset:1024 sc1
global_store_dwordx4 v60, v[56:59], s[44:45] offset:2048 sc1
global_store_dwordx4 v60, v[56:59], s[44:45] offset:3072 sc1
v_add_u32 v61, 4096, v60
v_cmp_gt_u32 vcc, {(REC-4096)//16}, v0
s_and_saveexec_b64 s[32:33], vcc
global_store_dwordx4 v61, v[56:59], s[44:45] sc1
s_mov_b64 exec, s[32:33]
""")
a.label("L_noclear")
a(f"""
global_load_dwordx4 v[48:51], v9, s[4:5]
global_load_dword v52, v9, s[4:5] offset:16
s_add_u32 s6, s6, s38
s_addc_u32 s7, s7, 0
s_add_u32 s8, s8, s38
s_addc_u32 s9, s9, 0
s_add_u32 s10, s10, s41
s_addc_u32 s11, s11, 0
s_cmp_ge_u32 s3, 4
s_cselect_b32 s56, s18, s16
s_cselect_b32 s57, s19, s17
s_add_u32 s56, s56, s59
s_addc_u32 s57, s57, 0
s_add_u32 s48, s26, s43
s_addc_u32 s49, s27, 0
""")
stream = [("w", j) for j in range(3)] + [("g", i) for i in range(3)]
stream += [("k", j) for j in range(16)] + [("v", j) for j in range(TPOS)] + [("t", j) for j in range(6)] + [("v", j) for j in range(TPOS, 16)]
issued = [0]
order = []
guard_upto = [0]
def issue_next():
    if issued[0] >= len(stream): return
    n = issued[0]
    if n < guard_upto[0]:
        a(f"s_cmp_gt_u32 s59, {n}\ns_cbranch_scc1 L_g{n}")
        issue_next_raw()
        a.label(f"L_g{n}")
    else:
        issue_next_raw()
def issue_next_raw():
    kind, j = stream[issued[0]]
    order.append((kind, j))
    issued[0] += 1
    if kind == "w":
        if j == 2: EX(M_L32)
        a(f"global_load_dwordx4 {v4(WB+4*j)}, v10, s[10:11] nt")
        if j == 2: EXR()
        else: a("s_add_u32 s10, s10, 32768\ns_addc_u32 s11, s11, 0")
    elif kind in "kv":
        lo = 6 if kind == "k" else 8
        B = KB if kind == "k" else VB
        a(f"global_load_dwordx4 {v4(B+4*j)}, v1, s[{lo}:{lo+1}] nt")
        if j < 15: a(f"s_add_u32 s{lo}, s{lo}, {65536 if IL else 8192}\ns_addc_u32 s{lo+1}, s{lo+1}, 0")
    elif kind == "g":
        if j == 2: EX(M_R4)
        a(f"global_load_dwordx4 {v4(GL+4*j)}, v11, s[56:57] nt")
        if j == 2: EXR()
        else: a(f"s_add_u32 s56, s56, {8*3456}\ns_addc_u32 s57, s57, 0")
    elif kind == "t":
        EX(M_C10)
        if j < 4:
            a(f"global_load_dwordx4 {v4(TL+4*j)}, v98, s[{12 if j < 2 else 14}:{13 if j < 2 else 15}] offset:{(j&1)*1280} nt")
        else:
            a(f"global_load_dwordx4 {v4(TL+4*j)}, v99, s[20:21] offset:{(j&1)*1280} nt")
        EXR()
def wait_for(item):
    i = order.index(item)
    a(f"s_waitcnt vmcnt({len(order) - 1 - i})")
def refill(done_item):
    i = order.index(done_item)
    while issued[0] < len(stream) and len(order) - 1 - i < D:
        if TILE_LATE and stream[issued[0]][0] == "t": break
        issue_next()

for _ in range(6): issue_next()
if B0: a("s_barrier")
for _ in range(KINIT): issue_next()
a(f"s_waitcnt vmcnt({6 + KINIT})")
stamp(1)
a(f"""
s_cmp_lg_u32 s3, 0
s_cbranch_scc1 L_nosig
v_mov_b32 v57, 1
s_lshl_b32 s38, s28, 2
v_mov_b32 v58, s38
v_cmp_eq_u32 vcc, 0, v0
s_and_saveexec_b64 s[32:33], vcc
global_atomic_add v58, v57, s[24:25] sc1
s_mov_b64 exec, s[32:33]
""")
a.label("L_nosig")
for k in range(5):
    a(f"v_lshlrev_b32 v{24+k}, 16, v{48+k}\nv_and_b32 v{32+k}, 0xffff0000, v{48+k}")
a("""
v_add_f32 v53, v24, v32
v_add_f32 v54, v25, v33
v_add_f32 v55, v26, v34
v_add_f32 v56, v27, v35
v_add_f32 v57, v28, v36
v_add_f32 v53, v53, v54
v_add_f32 v55, v55, v56
v_add_f32 v53, v53, v57
v_add_f32 v53, v53, v55
""")
row_allreduce("v_add_f32", "v53")
rows_allreduce("v_add_f32", "v53", "v54")
a("v_mul_f32 v53, 0x3acccccd, v53")
XS = [24, 25, 26, 27, 28, 32, 33, 34, 35, 36]
a("v_sub_f32 v55, v24, v53\nv_mul_f32 v54, v55, v55")
for r in XS[1:]:
    a(f"v_sub_f32 v55, v{r}, v53\nv_fmac_f32 v54, v55, v55")
row_allreduce("v_add_f32", "v54")
rows_allreduce("v_add_f32", "v54", "v55")
a("v_mul_f32 v54, 0x3acccccd, v54")
rbf("v53", "v53"); rbf("v54", "v54")
a("v_add_f32 v54, 0x3727c5ac, v54")
rbf("v54", "v54")
a("""
v_sqrt_f32 v55, v54
v_rcp_f32 v56, v55
v_fma_f32 v57, -v55, v55, v54
v_mul_f32 v56, 0.5, v56
v_fma_f32 v55, v57, v56, v55
""")
rbf("v55", "v55")
a("v_rcp_f32 v56, v55")
for r in XS: a(f"v_sub_f32 v{r}, v{r}, v53")
for r in XS: rbf(v(r), v(r))
for r in XS:
    a(f"v_mul_f32 v57, v{r}, v56\nv_fma_f32 v58, -v57, v55, v{r}\nv_fma_f32 v{r}, v58, v56, v57")
for k in range(5): a(f"v_cvt_pk_bf16_f32 v{48+k}, v{24+k}, v{32+k}")
for k in range(5): a(f"ds_write_b32 v9, v{48+k} offset:{XN+4*k}")
a(f"""
s_mul_i32 s38, s3, 20
s_mul_i32 s39, s29, 160
s_add_u32 s38, s38, s39
v_lshlrev_b32 v5, 3, v3
v_lshl_add_u32 v5, v15, 1, v5
v_add_u32 v5, s38, v5
ds_read_u16 v{XA_l}, v5 offset:{XN}
s_lshl_b32 s38, s58, 1
v_lshrrev_b32 v6, 3, v0
v_lshl_add_u32 v6, v6, 1, s38
ds_read_u16 v{XG}, v6 offset:{XN}
ds_read_u16 v{XG+2}, v6 offset:{XN+16}
ds_read_u16 v{XG+4}, v6 offset:{XN+32}
""")
for i in range(16): a(f"v_mov_b32 v{ACC+i}, 0")
a(f"""
s_waitcnt lgkmcnt(0)
v_lshlrev_b32 v{XA_h}, 16, v{XA_l}
v_lshlrev_b32 v{XG+1}, 16, v{XG}
v_lshlrev_b32 v{XG+3}, 16, v{XG+2}
v_lshlrev_b32 v{XG+5}, 16, v{XG+4}
""")
for j in range(3):
    wait_for(("w", j))
    if j == 2: EX(M_L32)
    for i in range(4):
        a(f"v_dot2c_f32_bf16_dpp v{ACC+2*i}, v{XA_l}, v{WB+4*j+i} row_newbcast:{j} {DPPM}")
        a(f"v_dot2c_f32_bf16_dpp v{ACC+2*i+1}, v{XA_h}, v{WB+4*j+i} row_newbcast:{j} {DPPM}")
    if j == 2: EXR()
    refill(("w", j))
reduce8_g(ACC)
a(f"""
v_lshlrev_b32 v4, 5, v3
v_lshl_add_u32 v4, v15, 3, v4
s_mul_i32 s38, s3, {R1S}
v_add_u32 v5, s38, v4
ds_write_b64 v5, v[{ACC}:{ACC+1}] offset:{RED1}
""")
for j in range(3):
    wait_for(("g", j))
    if j == 2: EX(M_R4)
    for i in range(4):
        a(f"v_dot2c_f32_bf16 v{AC2+2*i}, v{XG+2*j}, v{GL+4*j+i}")
        a(f"v_dot2c_f32_bf16 v{AC2+2*i+1}, v{XG+2*j+1}, v{GL+4*j+i}")
    if j == 2: EXR()
    refill(("g", j))
reduce8_g(AC2)
a(f"""
v_add_f32_dpp v{AC2}, v{AC2}, v{AC2} row_ror:8 row_mask:0xf bank_mask:0x3
v_add_f32_dpp v{AC2}, v{AC2+1}, v{AC2+1} row_ror:8 row_mask:0xf bank_mask:0xc
v_and_b32 v5, 7, v0
v_lshlrev_b32 v5, 5, v5
v_lshrrev_b32 v6, 5, v0
v_lshl_add_u32 v5, v6, 4, v5
v_bfe_u32 v6, v0, 4, 1
v_lshl_add_u32 v5, v6, 3, v5
v_bfe_u32 v6, v0, 3, 1
v_lshl_add_u32 v5, v6, 2, v5
s_mul_i32 s38, s3, {R1S}
v_add_u32 v5, s38, v5
ds_write_b32 v5, v{AC2} offset:{RED1+512}
ds_write_b32 v97, v97 offset:{LRED}
""")
if ECNT:
    a(f"""
s_cmp_lg_u32 s3, 0
s_cbranch_scc1 L_noec
v_and_b32 v8, 31, v0
v_lshlrev_b32 v8, 2, v8
global_load_dword v96, v8, s[24:25] sc1
""")
    a.label("L_noec")
    ecnt_mark = len(order)
a(f"""
s_waitcnt lgkmcnt(0)
s_barrier
v_and_b32 v6, 31, v0
v_lshrrev_b32 v7, 5, v0
s_cmp_ge_u32 s3, 4
s_cbranch_scc1 L_glupub
v_mul_u32_u24 v7, {4*R1S}, v7
v_lshl_add_u32 v7, v6, 2, v7
s_lshl_b32 s38, s3, 7
v_add_u32 v7, s38, v7
ds_read_b32 v48, v7 offset:{RED1}
ds_read_b32 v49, v7 offset:{RED1+R1S}
ds_read_b32 v50, v7 offset:{RED1+2*R1S}
ds_read_b32 v51, v7 offset:{RED1+3*R1S}
s_add_u32 s38, s38, {R_Q}
v_lshl_add_u32 v6, v6, 2, s38
s_waitcnt lgkmcnt(0)
v_add_f32 v48, v48, v49
v_add_f32 v50, v50, v51
v_add_f32 v48, v48, v50
s_branch L_pub0
""")
a.label("L_glupub")
a(f"""
v_mul_u32_u24 v7, {2*R1S}, v7
v_lshl_add_u32 v7, v6, 2, v7
s_and_b32 s38, s3, 1
s_lshl_b32 s38, s38, 7
s_bfe_u32 s39, s3, 0x10001
s_mul_i32 s40, s39, {4*R1S}
s_add_u32 s40, s40, s38
v_add_u32 v7, s40, v7
ds_read_b32 v48, v7 offset:{RED1+512}
ds_read_b32 v49, v7 offset:{RED1+512+R1S}
s_lshl_b32 s39, s39, 8
s_add_u32 s39, s39, s38
s_add_u32 s39, s39, {R_GLU}
v_lshl_add_u32 v6, v6, 2, s39
s_waitcnt lgkmcnt(0)
v_add_f32 v48, v48, v49
""")
a.label("L_pub0")
half_allreduce("v_add_f32", "v48", "v49")
a(f"v_min_u32 v48, 0xfffffffe, v48")
EX(M_L32)
a("global_store_dword v6, v48, s[44:45] sc1")
if 2 <= DUAL < 4: a("global_store_dword v6, v48, s[44:45]")
if DUAL >= 4: a(f"global_store_dword v6, v48, s[44:45] offset:{FOFF}")
EXR()
order.append(("pub", 0))
stamp(2)
a(f"""
s_lshl_b32 s38, s3, 4
v_lshl_add_u32 v98, v15, 1, s38
s_movk_i32 s39, 1280
v_mul_lo_u32 v98, v98, s39
v_lshl_add_u32 v98, v3, 4, v98
s_lshl_b32 s38, s3, 3
v_lshl_add_u32 v2, v15, 1, s38                ; 8w + 2g
v_mul_lo_u32 v99, v2, s39
v_lshl_add_u32 v99, v3, 4, v99
v_cndmask_b32 v99, 0, v99, {M_GV}
s_mul_i32 s38, s28, {128*1280}
s_mul_i32 s40, s29, 160
s_add_u32 s38, s38, s40
s_add_u32 s12, s12, s38
s_addc_u32 s13, s13, 0
s_mul_i32 s38, s46, {64*1280}
s_add_u32 s38, s38, s40
s_add_u32 s20, s20, s38
s_addc_u32 s21, s21, 0
s_add_u32 s14, s12, {8*1280}
s_addc_u32 s15, s13, 0
v_lshrrev_b32 v92, 5, v0
v_mul_u32_u24 v92, {32*REC}, v92
v_and_b32 v8, 31, v0
v_lshl_add_u32 v92, v8, 4, v92
v_add_u32 v93, {64*REC}, v92
v_add_u32 v94, {128*REC}, v92
v_add_u32 v95, {192*REC}, v92
v_lshlrev_b32 v8, 2, v8
s_cmp_eq_u32 s3, 0
s_cselect_b32 s58, {2 if NOEX else 0}, 2
s_add_u32 s42, s48, {FOFF}
s_addc_u32 s43, s49, 0
""")
def cnt_issue(): a("global_load_dword v96, v8, s[24:25] sc1")
def data_issue(fast=False):
    b = "s[42:43]" if fast else "s[48:49]"
    for k in range(4): a(f"global_load_dwordx4 {v4(PQ+4*k)}, v{92+k}, {b} offset:{R_Q} sc1")
    for k in range(4): a(f"global_load_dwordx4 {v4(PG+4*k)}, v{92+k}, {b} offset:{R_GLU} sc1")
def checkpoint(n, first=False, fast=False):
    a(f"s_cmp_ge_u32 s58, 2\ns_cbranch_scc1 L_ck{n}_skip")
    if first:
        cnt_issue()
    else:
        a(f"""
s_cmp_eq_u32 s58, 1
s_cbranch_scc1 L_ck{n}_data
v_readlane_b32 s38, v96, s28
s_cmp_ge_u32 s38, 8
s_cbranch_scc1 L_ck{n}_cntok
""")
        cnt_issue()
        a(f"s_branch L_ck{n}_skip")
        a.label(f"L_ck{n}_data")
        regs = list(range(PQ, PQ+16)) + list(range(PG, PG+16))
        a(f"v_max3_u32 v100, v{regs[0]}, v{regs[1]}, v{regs[2]}")
        a(f"v_max3_u32 v101, v{regs[3]}, v{regs[4]}, v{regs[5]}")
        rest = regs[6:]
        for i in range(0, len(rest), 2):
            a(f"v_max3_u32 v{100+(i//2)%2}, v{100+(i//2)%2}, v{rest[i]}, v{rest[i+1]}")
        a(f"""
v_max_u32 v100, v100, v101
v_cmp_eq_u32 vcc, -1, v100
s_cbranch_vccnz L_ck{n}_cntok
s_mov_b32 s58, 3
s_branch L_ck{n}_skip
""")
        a.label(f"L_ck{n}_cntok")
        a("s_mov_b32 s58, 1")
        data_issue(fast and DUAL >= 4)
    a.label(f"L_ck{n}_skip")
kv_items = [("k", j) for j in range(16)] + [("v", j) for j in range(VMAX + 1)]
nck = 0
started = bool(ECNT)
mark = ecnt_mark if ECNT else None
snap = None
for it in kv_items:
    exitable = it[0] == "v" or it == ("k", 15)
    if exitable and it != kv_items[-1]:
        a(f"ds_read_b32 v102, v97 offset:{LRED}")
    wait_for(it)
    if not started and it[1] >= CNT_AT:
        checkpoint(nck, first=True); nck += 1; started = True; mark = len(order)
    elif started and order.index(it) >= mark:
        checkpoint(nck, fast=True); nck += 1
        mark = len(order)
    refill(it)
    if exitable:
        if snap is None: snap = (list(order), issued[0])
        a(f"s_mov_b32 s59, {issued[0]}")
        if it != kv_items[-1]:
            a(f"""
s_cmp_eq_u32 s58, 3
s_cbranch_scc1 L_pqok
s_waitcnt lgkmcnt(0)
v_readfirstlane_b32 s38, v102
s_cmp_eq_u32 s38, 1
s_cbranch_scc1 L_b2
""")
a(f"s_cmp_lg_u32 s3, 0\ns_cbranch_scc1 L_flagspin")
a(f"s_cmp_eq_u32 s58, 3\ns_cbranch_scc1 L_pqok\ns_waitcnt vmcnt({len(order) - mark})")
checkpoint(nck); nck += 1
a("s_mov_b32 s47, 0")
a.label("L_pqloop")
a(f"""
s_cmp_eq_u32 s58, 3
s_cbranch_scc1 L_pqok
s_add_u32 s47, s47, 1
s_cmp_ge_u32 s47, {SPIN_MAX}
s_cbranch_scc1 L_pqok
s_waitcnt vmcnt(0)
""")
checkpoint(nck, fast=True)
a("s_waitcnt vmcnt(0)")
checkpoint(nck + 1)
a("s_branch L_pqloop")
a.label("L_flagspin")
a("s_mov_b32 s47, 0")
a.label("L_flagloop")
a(f"""
ds_read_b32 v102, v97 offset:{LRED}
s_add_u32 s47, s47, 1
s_cmp_ge_u32 s47, {SPIN_MAX*64}
s_cbranch_scc1 L_b2
s_waitcnt lgkmcnt(0)
v_readfirstlane_b32 s38, v102
s_cmp_eq_u32 s38, 1
s_cbranch_scc0 L_flagloop
s_branch L_b2
""")
guard_upto[0] = issued[0]
order[:] = snap[0]; issued[0] = snap[1]
a.label("L_pqok")
for i in range(4):
    a(f"v_add_f32 v{PQ+i}, v{PQ+i}, v{PQ+4+i}\nv_add_f32 v{PQ+8+i}, v{PQ+8+i}, v{PQ+12+i}")
    a(f"v_add_f32 v{PG+i}, v{PG+i}, v{PG+4+i}\nv_add_f32 v{PG+8+i}, v{PG+8+i}, v{PG+12+i}")
for i in range(4):
    a(f"v_add_f32 v{PQ+i}, v{PQ+i}, v{PQ+8+i}\nv_add_f32 v{PG+i}, v{PG+i}, v{PG+8+i}")
for i in range(4):
    half_allreduce("v_add_f32", v(PQ+i), v(PQ+4+i))
    half_allreduce("v_add_f32", v(PG+i), v(PG+4+i))
a(f"""
v_cvt_pk_bf16_f32 v{PQ+4}, v{PQ}, v{PQ+1}
v_cvt_pk_bf16_f32 v{PQ+5}, v{PQ+2}, v{PQ+3}
v_lshlrev_b32 v5, 1, v8                       ; (l&31)*8
ds_write_b64 v5, v[{PQ+4}:{PQ+5}] offset:{QF}
""")
for i in range(4):
    rbf(v(PG+i), v(PG+i))
for i in range(4):
    a(f"v_mov_b32 v{PG+4+i}, v{PG+i}\nv_permlane16_swap_b32 v{PG+i}, v{PG+4+i}")
for i in range(4):
    g_, u_, t0, t1 = PG+i, PG+4+i, PG+8+i, PG+12+i
    a(f"""
v_mul_f32 v{g_}, {LOG2E ^ 0x80000000:#x}, v{g_}
v_min_f32 v{g_}, 0x42fc0000, v{g_}
v_exp_f32 v{g_}, v{g_}
v_add_f32 v{g_}, 1.0, v{g_}
v_rcp_f32 v{t0}, v{g_}
v_fma_f32 v{t1}, -v{t0}, v{g_}, 1.0
v_fma_f32 v{t0}, v{t1}, v{t0}, v{t0}
""")
    rbf(v(t0), v(t0))
    a(f"v_mul_f32 v{t0}, v{t0}, v{u_}\nv_cndmask_b32 v{t0}, 0, v{t0}, {M_GV}")
a(f"""
v_cvt_pk_bf16_f32 v{PG}, v{PG+8}, v{PG+9}
v_cvt_pk_bf16_f32 v{PG+1}, v{PG+10}, v{PG+11}
v_lshlrev_b32 v5, 3, v3
ds_write_b64 v5, v[{PG}:{PG+1}] offset:{HF}
v_mov_b32 v102, 1
s_waitcnt lgkmcnt(0)
ds_write_b32 v97, v102 offset:{LRED}
""")
a.label("L_b2")
a(f"""
v_lshlrev_b32 v6, 4, v3
ds_read_b128 {v4(QR)}, v6 offset:{QF}
""")
for j in range(16): a(f"v_mov_b32 v{S+j}, 0")
a("s_waitcnt lgkmcnt(0)")
for i in range(4):
    for j in range(16):
        a(f"v_dot2c_f32_bf16 v{S+j}, v{KB+4*j+i}, v{QR+i}")
for i in range(8):
    a(f"v_add_f32_dpp v{S+i}, v{S+i}, v{S+i} row_ror:8 row_mask:0xf bank_mask:0x3")
    a(f"v_add_f32_dpp v{S+i}, v{S+i+8}, v{S+i+8} row_ror:8 row_mask:0xf bank_mask:0xc")
for i in range(4):
    a(f"v_add_f32_dpp v{S+i}, v{S+i}, v{S+i} row_half_mirror row_mask:0xf bank_mask:0x5")
    a(f"v_add_f32_dpp v{S+i}, v{S+i+4}, v{S+i+4} row_half_mirror row_mask:0xf bank_mask:0xa")
a(f"""
v_cndmask_b32 v{S+4}, v{S}, v{S+2}, {M_B1}
v_cndmask_b32 v{S+5}, v{S+2}, v{S}, {M_B1}
v_cndmask_b32 v{S+6}, v{S+1}, v{S+3}, {M_B1}
v_cndmask_b32 v{S+7}, v{S+3}, v{S+1}, {M_B1}
v_add_f32_dpp v{S}, v{S+5}, v{S+4} quad_perm:[2,3,0,1] {DPPM}
v_add_f32_dpp v{S+1}, v{S+7}, v{S+6} quad_perm:[2,3,0,1] {DPPM}
v_cndmask_b32 v{S+2}, v{S}, v{S+1}, {M_B0}
v_cndmask_b32 v{S+3}, v{S+1}, v{S}, {M_B0}
v_add_f32_dpp v{S}, v{S+3}, v{S+2} quad_perm:[1,0,3,2] {DPPM}
""")
for _ in range(TOP2): issue_next()
rbf(v(S), v(S))
a(f"v_mul_f32 v{S}, {SCALE:#x}, v{S}")
rbf(v(S), v(S))
a(f"v_mov_b32 v{S+6}, v{S}")
row_allreduce("v_max_f32", v(S+6))
rows_allreduce("v_max_f32", v(S+6), v(S+2))
a(f"""
v_sub_f32 v{S+7}, v{S}, v{S+6}
v_mul_f32 v{S+7}, {LOG2E:#x}, v{S+7}
v_exp_f32 v{S+7}, v{S+7}
""")
row_allreduce("v_add_f32", v(S+7))
rows_allreduce("v_add_f32", v(S+7), v(S+3))
a(f"""
s_lshl_b32 s38, s3, 3
v_mov_b32 v6, s38
ds_write_b64 v6, v[{S+6}:{S+7}] offset:{MAXA}
s_waitcnt lgkmcnt(0)
s_barrier
v_and_b32 v7, 7, v0
v_lshlrev_b32 v7, 3, v7
ds_read_b64 v[{S+4}:{S+5}], v7 offset:{MAXA}
v_lshlrev_b32 v7, 1, v2
ds_read_b32 v18, v7 offset:{HF}
s_waitcnt lgkmcnt(0)
v_mov_b32 v{S+1}, v{S+4}
""")
row_allreduce("v_max_f32", v(S+1), (4, 2, 1))
PL, PH = S + 2, S + 3
LW = 22
a(f"""
v_sub_f32 v{S+4}, v{S+4}, v{S+1}
v_mul_f32 v{S+4}, {LOG2E:#x}, v{S+4}
v_exp_f32 v{S+4}, v{S+4}
v_min_u32 v{MX}, 0xfffffffe, v{S+1}
v_sub_f32 v{S}, v{S}, v{S+1}
v_mul_f32 v{S}, {LOG2E:#x}, v{S}
v_exp_f32 v{S}, v{S}
v_mul_f32 v{LW}, v{S+5}, v{S+4}
v_cvt_pk_bf16_f32 v{PL}, v{S}, 0
v_cvt_pk_bf16_f32 v{PH}, 0, v{S}
""")
row_allreduce("v_add_f32", v(LW), (4, 2, 1))
a(f"""
v_min_u32 v{LW}, 0xfffffffe, v{LW}
s_lshl_b32 s38, s3, 9
v_add_u32 v10, s38, v4
v_and_b32 v5, 7, v0
v_lshrrev_b32 v6, 3, v0
v_lshlrev_b32 v6, 9, v6
v_lshl_add_u32 v6, v5, 3, v6
s_lshl_b32 s38, s3, 6
v_add_u32 v11, s38, v6
s_lshl_b32 s38, s3, 7
v_lshl_add_u32 v12, v5, 4, s38
v_lshrrev_b32 v6, 1, v3
v_mul_u32_u24 v6, {32*REC}, v6
v_and_b32 v7, 1, v3
v_lshl_add_u32 v7, v7, 2, v15
v_lshl_add_u32 v9, v7, 4, v6
v_add_u32 v9, s38, v9
v_cmp_gt_u32 s[56:57], 8, v0
v_lshrrev_b32 v6, 1, v15
v_mul_u32_u24 v6, 320, v6
v_lshl_add_u32 v6, v3, 5, v6
v_and_b32 v7, 1, v15
v_lshl_add_u32 v6, v7, 4, v6
s_mul_i32 s39, s3, 640
v_add_u32 v14, s39, v6
v_and_b32 v6, 31, v0
v_lshrrev_b32 v7, 5, v0
v_mul_u32_u24 v7, {4*640}, v7
v_lshl_add_u32 v7, v6, 2, v7
v_add_u32 v16, s38, v7
v_lshl_add_u32 v17, v6, 2, s38
v_and_b32 v19, 0xffff, v18
v_lshlrev_b32 v20, 16, v18
v_lshrrev_b32 v21, 16, v18
v_and_b32 v18, 0xffff0000, v18
""")
stamp(3)
for i in range(8): a(f"v_mov_b32 v{ACC+i}, 0")
B2_ITEM = ("k", 15)
pos_b2 = stream.index(B2_ITEM)
last_v = stream.index(("v", 15))
for pi, it in enumerate(stream):
    if it[0] not in "vt" or pi > last_v: continue
    if pi > pos_b2:
        wait_for(it)
        refill(it)
    elif pi == stream.index(("v", 0)):
        refill(B2_ITEM)
    if pi == last_v:
        while issued[0] < len(stream): issue_next()
    if it[0] == "v":
        j = it[1]
        if j % 4 == 3: stamp(12 + j // 4)
        for i in range(4):
            a(f"v_dot2c_f32_bf16_dpp v{ACC+2*i}, v{PL}, v{VB+4*j+i} row_newbcast:{j} {DPPM}")
            a(f"v_dot2c_f32_bf16_dpp v{ACC+2*i+1}, v{PH}, v{VB+4*j+i} row_newbcast:{j} {DPPM}")
reduce8_g(ACC)
a(f"""
ds_write_b64 v10, v[{ACC}:{ACC+1}] offset:{RED2}
v_mov_b32 v50, v{MX}
v_mov_b32 v51, v{LW}
s_waitcnt lgkmcnt(0)
s_barrier
""")
stamp(4)
if DIAG: a("s_memrealtime s[96:97]")
a(f"""
ds_read_b64 v[48:49], v11 offset:{RED2}
s_waitcnt lgkmcnt(0)
v_add_f32_dpp v48, v48, v48 row_ror:8 {DPPM}
v_add_f32_dpp v49, v49, v49 row_ror:8 {DPPM}
v_mov_b32 v52, v48
v_mov_b32 v53, v49
v_permlane32_swap_b32 v48, v52
v_permlane32_swap_b32 v49, v53
v_add_f32 v48, v48, v52
v_add_f32 v49, v49, v53
v_mov_b32 v52, v48
v_mov_b32 v53, v49
v_permlane16_swap_b32 v48, v52
v_permlane16_swap_b32 v49, v53
v_add_f32 v48, v48, v52
v_add_f32 v49, v49, v53
v_min_u32 v48, 0xfffffffe, v48
v_min_u32 v49, 0xfffffffe, v49
s_mov_b64 s[32:33], exec
s_mov_b64 exec, s[56:57]
global_store_dwordx4 v12, v[48:51], s[44:45] offset:{R_O2}
global_store_dwordx4 v12, v[48:51], s[44:45] offset:{R_O} sc1
s_mov_b64 exec, s[32:33]
""")
def pissue(k):
    a(f"global_load_dwordx4 v[{100+4*k}:{103+4*k}], v9, s[48:49] offset:{R_O2 if DUAL >= 3 else R_O} {FASTF if DUAL >= 3 else 'sc1'}")
assert NPOLL <= 3
pissue(0)
stamp(8)
a(f"""
s_cmp_lg_u32 s28, s29
s_cbranch_scc1 L_nofc
s_cmp_lg_u32 s3, 7
s_cbranch_scc1 L_nofc
s_mov_b32 s47, 0
""")
a.label("L_poll_c")
a(f"""
global_load_dword v48, v8, s[24:25] sc1
s_waitcnt vmcnt(0)
v_cmp_gt_u32 vcc, 8, v48
s_cbranch_vccz L_nofc
s_add_u32 s47, s47, 1
s_cmp_lt_u32 s47, {SPIN_MAX}
s_cbranch_scc1 L_poll_c
""")
a.label("L_nofc")
for i in range(16): a(f"v_mov_b32 v{ACC+i}, 0")
a(f"""
s_waitcnt vmcnt(3)
""")
for i in range(2):
    for k in range(4):
        a(f"v_cndmask_b32 v{TL+16+4*i+k}, 0, v{TL+16+4*i+k}, {M_GV}")
for i in range(2):
    for k in range(4):
        a(f"v_dot2c_f32_bf16 v{AC2+2*k}, v{(19, 21)[i]}, v{TL+16+4*i+k}")
        a(f"v_dot2c_f32_bf16 v{AC2+2*k+1}, v{(20, 18)[i]}, v{TL+16+4*i+k}")
a("s_mov_b32 s47, 0")
for k in range(1, NPOLL - 1):
    pissue(k)
    a(f"s_sleep {POLLGAP}")
a.label("L_poll_o")
if POLLNT:
    assert NPOLL == 1
    for t in range(POLLNT + 1):
        a(f"""
s_waitcnt vmcnt(0)
v_max3_u32 v52, v100, v101, v102
v_max_u32 v52, v52, v103
v_cmp_eq_u32 vcc, -1, v52
s_cbranch_vccz L_poll_o_ok0
global_load_dwordx4 v[100:103], v9, s[48:49] offset:{(R_O2 if DUAL >= 3 else R_O) if t < POLLNT else R_O} {FASTF if t < POLLNT else "sc1"}
""")
else:
  for k in range(NPOLL):
    if NPOLL > 1: pissue((k + NPOLL - 1) % NPOLL)
    b = 100 + 4*k
    a(f"""
s_waitcnt vmcnt({NPOLL-1})
v_max3_u32 v52, v{b}, v{b+1}, v{b+2}
v_max_u32 v52, v52, v{b+3}
v_cmp_eq_u32 vcc, -1, v52
s_cbranch_vccz L_poll_o_ok{k}
""")
    if NPOLL == 1:
        if PSLEEP: a(f"s_sleep {PSLEEP}")
        pissue(0)
a(f"""
s_add_u32 s47, s47, 1
s_cmp_lt_u32 s47, {SPIN_MAX}
s_cbranch_scc1 L_poll_o
""")
for k in range(NPOLL):
    a.label(f"L_poll_o_ok{k}")
    for i in range(4): a(f"v_mov_b32 v{48+i}, v{100+4*k+i}")
    if k < NPOLL - 1: a("s_branch L_poll_o_ok")
a.label("L_poll_o_ok")
stamp(5)
if STAMPS: a("s_mov_b32 s78, s47\ns_mov_b32 s79, 0")
a("v_mov_b32 v52, v50")
row_allreduce("v_max_f32", "v52", (8, 4, 2))
a(f"""
v_sub_f32 v50, v50, v52
v_mul_f32 v50, {LOG2E:#x}, v50
v_exp_f32 v50, v50
v_mul_f32 v51, v51, v50
v_mul_f32 v48, v48, v50
v_mul_f32 v49, v49, v50
""")
for r in (8, 4, 2):
    for x in (51, 48, 49):
        a(f"v_add_f32_dpp v{x}, v{x}, v{x} row_ror:{r} {DPPM}")
a(f"""
v_rcp_f32 v52, v51
v_mul_f32 v53, v48, v52
v_mul_f32 v54, v49, v52
v_fma_f32 v55, -v53, v51, v48
v_fma_f32 v56, -v54, v51, v49
v_fma_f32 v53, v55, v52, v53
v_fma_f32 v54, v56, v52, v54
v_cvt_pk_bf16_f32 v55, v53, 0
v_cvt_pk_bf16_f32 v56, 0, v53
v_cvt_pk_bf16_f32 v57, v54, 0
v_cvt_pk_bf16_f32 v58, 0, v54
""")
for j in range(4):
    lo = 55 + 2*(j & 1)
    for i in range(4):
        a(f"v_dot2c_f32_bf16_dpp v{ACC+2*i}, v{lo}, v{TL+4*j+i} row_newbcast:{j>>1} {DPPM}")
        a(f"v_dot2c_f32_bf16_dpp v{ACC+2*i+1}, v{lo+1}, v{TL+4*j+i} row_newbcast:{j>>1} {DPPM}")
for i in range(8): a(f"v_permlane32_swap_b32 v{ACC+i}, v{AC2+i}")
for i in range(8): a(f"v_add_f32 v{ACC+i}, v{ACC+i}, v{AC2+i}")
for i in range(4): a(f"v_permlane16_swap_b32 v{ACC+i}, v{ACC+i+4}")
for i in range(4): a(f"v_add_f32 v{ACC+i}, v{ACC+i}, v{ACC+i+4}")
EX(M_C10)
a(f"ds_write_b128 v14, v[{ACC}:{ACC+3}] offset:{RED3}")
EXR()
a(f"""
s_waitcnt lgkmcnt(0)
s_barrier
s_cmp_gt_u32 s3, 4
s_cbranch_scc1 L_pub2done
ds_read_b32 v48, v16 offset:{RED3}
ds_read_b32 v49, v16 offset:{RED3+640}
ds_read_b32 v50, v16 offset:{RED3+1280}
ds_read_b32 v51, v16 offset:{RED3+1920}
s_waitcnt lgkmcnt(0)
v_add_f32 v48, v48, v49
v_add_f32 v50, v50, v51
v_add_f32 v48, v48, v50
""")
half_allreduce("v_add_f32", "v48", "v49")
a("v_min_u32 v48, 0xfffffffe, v48")
EX(M_L32)
a(f"global_store_dword v17, v48, s[44:45] offset:{R_Y} sc1")
EXR()
a.label("L_pub2done")
stamp(6)
a(f"""
s_cmp_lg_u32 s28, s29
s_cbranch_scc1 L_fin_end
s_mul_i32 s38, s29, {32*REC}
s_mul_i32 s39, s3, {4*REC}
s_add_u32 s38, s38, s39
s_add_u32 s38, s38, {R_Y}
s_add_u32 s40, s26, s38
s_addc_u32 s41, s27, 0
s_add_u32 s42, s40, {2*REC}
s_addc_u32 s43, s41, 0
v_lshlrev_b32 v6, 4, v0
v_add_u32 v10, {REC}, v6
s_mul_i32 s38, s29, 160
s_lshl_b32 s39, s3, 5
s_add_u32 s38, s38, s39
v_lshl_add_u32 v8, v3, 1, s38
v_min_u32 v8, 1278, v8
global_load_ushort v9, v8, s[4:5]
v_cmp_gt_u32 vcc, 40, v0
s_and_saveexec_b64 s[32:33], vcc
s_mov_b32 s47, 0
""")
a.label("L_poll_y")
a(f"""
global_load_dwordx4 v[24:27], v6, s[40:41] sc1
global_load_dwordx4 v[28:31], v10, s[40:41] sc1
global_load_dwordx4 v[32:35], v6, s[42:43] sc1
global_load_dwordx4 v[36:39], v10, s[42:43] sc1
s_waitcnt vmcnt(0)
v_max3_u32 v48, v24, v25, v26
v_max3_u32 v49, v27, v28, v29
v_max3_u32 v50, v30, v31, v32
v_max3_u32 v51, v33, v34, v35
v_max3_u32 v52, v36, v37, v38
v_max3_u32 v48, v48, v49, v39
v_max3_u32 v50, v50, v51, v52
v_max_u32 v48, v48, v50
v_cmp_eq_u32 vcc, -1, v48
s_cbranch_vccz L_poll_y_ok
s_add_u32 s47, s47, 1
s_cmp_lt_u32 s47, {SPIN_MAX}
s_cbranch_scc1 L_poll_y
""")
a.label("L_poll_y_ok")
for i in range(4):
    a(f"v_add_f32 v{24+i}, v{24+i}, v{28+i}\nv_add_f32 v{32+i}, v{32+i}, v{36+i}")
for i in range(4):
    a(f"v_add_f32 v{24+i}, v{24+i}, v{32+i}")
a(f"""
s_mul_i32 s38, s3, 640
v_add_u32 v7, s38, v6
ds_write_b128 v7, v[24:27] offset:{RED4}
s_mov_b64 exec, s[32:33]
s_waitcnt lgkmcnt(0)
s_barrier
s_cmp_gt_u32 s3, 4
s_cbranch_scc1 L_fin_end
v_lshrrev_b32 v6, 1, v15
v_mul_u32_u24 v6, 320, v6
v_and_b32 v7, 1, v15
v_mul_u32_u24 v7, {4*640}, v7
v_add_u32 v6, v6, v7
v_lshl_add_u32 v6, v3, 2, v6
s_lshl_b32 s38, s3, 6
v_add_u32 v6, s38, v6
ds_read_b32 v48, v6 offset:{RED4}
ds_read_b32 v49, v6 offset:{RED4+640}
ds_read_b32 v50, v6 offset:{RED4+1280}
ds_read_b32 v51, v6 offset:{RED4+1920}
s_waitcnt lgkmcnt(0)
v_add_f32 v48, v48, v49
v_add_f32 v50, v50, v51
v_add_f32 v48, v48, v50
v_mov_b32 v49, v48
v_permlane16_swap_b32 v48, v49
v_add_f32 v48, v48, v49
""")
rbf("v48", "v48")
a(f"""
v_mov_b32 v49, v48
v_permlane32_swap_b32 v48, v49
v_lshlrev_b32 v9, 16, v9
v_add_f32 v48, v9, v48
""")
rbf("v48", "v48")
a(f"""
v_add_f32 v48, v48, v49
v_cvt_pk_bf16_f32 v48, v48, 0
v_cmp_gt_u32 vcc, 16, v0
s_and_saveexec_b64 s[32:33], vcc
global_store_short v8, v48, s[22:23]
s_mov_b64 exec, s[32:33]
""")
a.label("L_fin_end")
stamp(7)
if DIAG:
    a("""
s_memrealtime s[92:93]
s_waitcnt lgkmcnt(0)
s_cmp_lg_u32 s3, 0
s_cbranch_scc1 L_end
v_cmp_eq_u32 vcc, 0, v0
s_and_saveexec_b64 s[32:33], vcc
s_not_b32 s90, s90
v_mov_b32 v1, 0
v_mov_b32 v2, s90
v_mov_b32 v3, s92
v_mov_b32 v4, s96
global_atomic_umax v1, v2, s[94:95] sc1
global_atomic_umax v1, v3, s[94:95] offset:4 sc1
global_atomic_umax v1, v4, s[94:95] offset:8 sc1
""")
if STAMPS:
    a(f"""
s_waitcnt lgkmcnt(0)
s_cmp_lg_u32 s3, {STAMPWAVE}
s_cbranch_scc1 L_end
v_cmp_eq_u32 vcc, 0, v0
s_and_saveexec_b64 s[32:33], vcc
s_mul_i32 s38, s2, {NST*8}
s_add_u32 s38, s38, {STAMP_OFF}
v_mov_b32 v1, s38
""")
    for i in range(NST):
        a(f"v_mov_b32 v2, s{60+2*i}\nv_mov_b32 v3, s{61+2*i}\nglobal_store_dwordx2 v1, v[2:3], s[26:27] offset:{8*i}")
a.label("L_end")
a("s_endpgm")

hdr = open("parallel_sum__sliding_block_cached__glu_gated_glu__decode.s.ref").read().split("; Override")[0]
out = hdr + f"""; Override launch geometry by editing the next line (default: block=256,
; grid=ceil(out_elems/256), lds=0). Harness parses it; keep it on one line.
; @launch grid=(256,1,1) block=(512,1,1) lds={LDS_BYTES}
.amdgcn_target "amdgcn-amd-amdhsa--gfx950"
.text
.globl {NAME}
.p2align 8
.type {NAME},@function
{NAME}:
""" + a.render() + f""".section .rodata,"a"
.p2align 6
.amdhsa_kernel {NAME}
  .amdhsa_next_free_vgpr {NVGPR}
  .amdhsa_next_free_sgpr 102
  .amdhsa_accum_offset {NVGPR}
  .amdhsa_group_segment_fixed_size 0
  .amdhsa_kernarg_size 96
  .amdhsa_user_sgpr_count 2
  .amdhsa_user_sgpr_kernarg_segment_ptr 1
  .amdhsa_system_sgpr_workgroup_id_x 1
.end_amdhsa_kernel
"""
open(sys.argv[1], "w").write(out)
```
